```python
import torch

def _softmax(x, axis=-1):
    return torch.softmax(x, dim=axis)
def _gelu(x):
    return torch.nn.functional.gelu(x, approximate="tanh")
def _silu(x):
    return torch.nn.functional.silu(x)
def _sigmoid(x):
    return torch.sigmoid(x)
def _layernorm(x, axis=-1, eps=1e-5):
    m = x.mean(dim=axis, keepdim=True)
    v = x.var(dim=axis, keepdim=True, unbiased=False)
    return (x - m) / torch.sqrt(v + eps)
def _scatter_add(tgt, idx, src, axis=0):
    return tgt.clone().index_add_(axis, idx, src)
def _segment_sum(src, seg, n):
    out = torch.zeros((n,) + src.shape[1:], dtype=src.dtype)
    return out.index_add_(0, seg, src)
def _pad(x, pw):
    flat = tuple(v for pair in reversed(pw) for v in pair)
    return torch.nn.functional.pad(x, flat)

kernel_name = 'concat_heads__gqa_block_cached__gqa_block_cached__near_ridge'

def setup_inputs():

    _w = (lambda a: (lambda t: t.to(torch.bfloat16) if t.is_floating_point() else t)(torch.as_tensor(a)))
    def _A_setup():
        B, Sq, D = 32, 48, 512
        Hq, Hkv, Sk, Dh = 32, 8, 512, 128
        assert Hq % Hkv == 0, (Hq, Hkv)
        return {
            "x": _w((lambda *s: torch.randn(*s, dtype=torch.bfloat16) * 0.8)(B, Sq, D)),
            "k_cache": _w((lambda *s: torch.randn(*s, dtype=torch.bfloat16) * 0.8)(B, Hkv, Sk, Dh)),
            "v_cache": _w((lambda *s: torch.randn(*s, dtype=torch.bfloat16) * 0.05)(B, Hkv, Sk, Dh)),
            "wq": _w((lambda *s: torch.randn(*s, dtype=torch.bfloat16) * 0.8)(D, Hq * Dh) * (D ** -0.5)),
            "wo": _w((lambda *s: torch.randn(*s, dtype=torch.bfloat16) * 0.05)(Hq * Dh, D) * ((Hq * Dh) ** -0.5)),
        }
    _A_in = _A_setup()

    def _B_setup():
        B, Sq, D = 32, 48, 512
        Hq, Hkv, Sk, Dh = 32, 8, 512, 128
        assert Hq % Hkv == 0, (Hq, Hkv)
        return {
            "x": _w((lambda *s: torch.randn(*s, dtype=torch.bfloat16) * 0.8)(B, Sq, D)),
            "k_cache": _w((lambda *s: torch.randn(*s, dtype=torch.bfloat16) * 0.8)(B, Hkv, Sk, Dh)),
            "v_cache": _w((lambda *s: torch.randn(*s, dtype=torch.bfloat16) * 0.05)(B, Hkv, Sk, Dh)),
            "wq": _w((lambda *s: torch.randn(*s, dtype=torch.bfloat16) * 0.8)(D, Hq * Dh) * (D ** -0.5)),
            "wo": _w((lambda *s: torch.randn(*s, dtype=torch.bfloat16) * 0.05)(Hq * Dh, D) * ((Hq * Dh) ** -0.5)),
        }
    _B_in = _B_setup()

    return {
        "A_x": _A_in["x"],
        "A_k_cache": _A_in["k_cache"],
        "A_v_cache": _A_in["v_cache"],
        "A_wq": _A_in["wq"],
        "A_wo": _A_in["wo"],
        "B_x": _B_in["x"],
        "B_k_cache": _B_in["k_cache"],
        "B_v_cache": _B_in["v_cache"],
        "B_wq": _B_in["wq"],
        "B_wo": _B_in["wo"],
    }

def reference(A_x, A_k_cache, A_v_cache, A_wq, A_wo, B_x, B_k_cache, B_v_cache, B_wq, B_wo):
    def _A_ref(x, k_cache, v_cache, wq, wo):
        B, Sq, D = x.shape
        Hq, Dh = 32, 128
        Hkv = k_cache.shape[1]
        rep = Hq // Hkv
        q = (lambda x, *d: x.permute(*d))((x @ wq).reshape(B, Sq, Hq, Dh), 0, 2, 1, 3)
        k = (lambda x, n, axis: torch.repeat_interleave(x, n, dim=axis))(k_cache, rep, axis=1)
        v = (lambda x, n, axis: torch.repeat_interleave(x, n, dim=axis))(v_cache, rep, axis=1)
        scores = torch.einsum("bhqd,bhkd->bhqk", q, k) * (Dh ** -0.5)
        p = _softmax(scores, axis=-1)
        o = torch.einsum("bhqk,bhkd->bhqd", p, v)
        return (lambda x, *d: x.permute(*d))(o, 0, 2, 1, 3).reshape(B, Sq, Hq * Dh) @ wo

    def _B_ref(x, k_cache, v_cache, wq, wo):
        B, Sq, D = x.shape
        Hq, Dh = 32, 128
        Hkv = k_cache.shape[1]
        rep = Hq // Hkv
        q = (lambda x, *d: x.permute(*d))((x @ wq).reshape(B, Sq, Hq, Dh), 0, 2, 1, 3)
        k = (lambda x, n, axis: torch.repeat_interleave(x, n, dim=axis))(k_cache, rep, axis=1)
        v = (lambda x, n, axis: torch.repeat_interleave(x, n, dim=axis))(v_cache, rep, axis=1)
        scores = torch.einsum("bhqd,bhkd->bhqk", q, k) * (Dh ** -0.5)
        p = _softmax(scores, axis=-1)
        o = torch.einsum("bhqk,bhkd->bhqd", p, v)
        return (lambda x, *d: x.permute(*d))(o, 0, 2, 1, 3).reshape(B, Sq, Hq * Dh) @ wo

    a = _A_ref(A_x, A_k_cache, A_v_cache, A_wq, A_wo)
    b = _B_ref(B_x, B_k_cache, B_v_cache, B_wq, B_wo)
    return torch.concatenate([a, b], axis=-1)
```

```python
KNAME = "concat_heads__gqa_block_cached__gqa_block_cached__near_ridge_kernel"

class Asm:
    def __init__(self):
        self.lines = []
    def __call__(self, s=""):
        for l in s.split("\n"):
            self.lines.append("    " + l.strip() if l.strip() and not l.strip().endswith(":") else l.strip())
    def label(self, name):
        self.lines.append(name + ":")
    def text(self):
        return "\n".join(self.lines) + "\n"

def vr(b, n=1):
    return f"v{b}" if n == 1 else f"v[{b}:{b+n-1}]"
def ar(b, n=1):
    return f"a{b}" if n == 1 else f"a[{b}:{b+n-1}]"
def sr(b, n=1):
    return f"s{b}" if n == 1 else f"s[{b}:{b+n-1}]"

HEADER_COMMENT = """; Kernarg layout for this problem (104 bytes, ptrs only, base s[0:1]):
"""

def kernel_open(name):
    return f""".globl {name}
.p2align 8
.type {name},@function
{name}:
"""

def kernel_desc(name, nvgpr, accum, nsgpr=102):
    return f""".amdhsa_kernel {name}
  .amdhsa_next_free_vgpr {nvgpr}
  .amdhsa_next_free_sgpr {nsgpr}
  .amdhsa_accum_offset {accum}
  .amdhsa_group_segment_fixed_size 0
  .amdhsa_kernarg_size 104
  .amdhsa_user_sgpr_count 2
  .amdhsa_user_sgpr_kernarg_segment_ptr 1
  .amdhsa_system_sgpr_workgroup_id_x 1
  .amdhsa_float_denorm_mode_32 3
.end_amdhsa_kernel
"""

def wrap_single(body, grid, block, lds, nvgpr, accum, name=KNAME):
    s = HEADER_COMMENT
    s += f"; @launch grid=({grid},1,1) block=({block},1,1) lds={lds}\n"
    s += '.amdgcn_target "amdgcn-amd-amdhsa--gfx950"\n.text\n'
    s += kernel_open(name) + body
    s += '.section .rodata,"a"\n.p2align 6\n' + kernel_desc(name, nvgpr, accum)
    return s

def interleave(mfmas, fillers):
    out = list(fillers.get(-1, []))
    for i, m in enumerate(mfmas):
        out.append(m)
        out += fillers.get(i, [])
    return out
```

```python
import re

RX = re.compile(r'^-?\|?([vas])(?:(\d+)|\[(\d+):(\d+)\])\|?$')

def regs_of(tok):
    tok = tok.strip()
    m = RX.match(tok)
    if m:
        k = m.group(1)
        if m.group(2) is not None:
            return [(k, int(m.group(2)))]
        return [(k, i) for i in range(int(m.group(3)), int(m.group(4)) + 1)]
    if tok == 'vcc':
        return [('s', 'vcc')]
    if tok == 'm0':
        return [('s', 'm0')]
    if tok == 'exec':
        return [('s', 'exec')]
    return []

TRANS = ('v_exp_', 'v_rcp_', 'v_log_', 'v_rsq_', 'v_sqrt_')
COST = {'V': 4, 'T': 8, 'P': 8, 'DR': 4, 'DW': 20, 'X': 8, 'GL': 8, 'GS': 16, 'S': 0, 'W': 0, 'B': 0, 'M': 0, 'L': 0, 'SL': 0}

class I:
    def __init__(self, text, tag=None, lds=None, vm=None, lg=None):
        self.t = text.strip()
        self.tag = tag
        self.lds = lds
        self.vm = vm
        self.lg = lg
        self.R = []; self.Wr = []; self.C = []
        t = self.t
        if t == 'WAIT':
            self.k = 'W'; return
        if t.endswith(':') or t.startswith('.') or t.startswith(';'):
            self.k = 'L'; return
        sp = t.split(None, 1)
        mn = sp[0]; self.mn = mn
        ops = [o.strip() for o in sp[1].split(',')] if len(sp) > 1 else []
        if ops:
            ops[-1] = ops[-1].split()[0]
        rr = [regs_of(o) for o in ops]
        flat = lambda l: [x for y in l for x in y]
        if mn.startswith('v_mfma'):
            self.k = 'M'; self.Wr = rr[0]; self.R = rr[1] + rr[2]; self.C = rr[3]
        elif mn.startswith('ds_read'):
            self.k = 'DR'; self.Wr = rr[0]; self.R = rr[1]
        elif mn.startswith('ds_write'):
            self.k = 'DW'; self.R = flat(rr)
        elif mn.startswith('buffer_load') and t.endswith(' lds'):
            self.k = 'X'; self.R = flat(rr) + [('s', 'm0')]
        elif mn.startswith('buffer_load') or mn.startswith('global_load'):
            self.k = 'GL'; self.Wr = rr[0]; self.R = flat(rr[1:])
        elif mn.startswith('buffer_store') or mn.startswith('buffer_atomic'):
            self.k = 'GS'; self.R = flat(rr); self.data = rr[0]
        elif mn.startswith('v_permlane'):
            self.k = 'P'; self.R = flat(rr); self.Wr = flat(rr)
        elif mn.startswith('v_'):
            self.k = 'T' if mn.startswith(TRANS) else 'V'
            if mn == 'v_nop':
                ops = []
            else:
                self.Wr = rr[0]; self.R = flat(rr[1:])
                if mn.startswith('v_cndmask') and len(ops) == 3:
                    self.R += [('s', 'vcc')]
                if mn.startswith('v_fmac') or mn.startswith('v_writelane'):
                    self.R += rr[0]
        elif mn == 's_barrier':
            self.k = 'B'
        elif mn == 's_waitcnt':
            self.k = 'W'
        elif mn.startswith('s_load') or mn.startswith('s_memtime') or mn.startswith('s_memrealtime'):
            self.k = 'SL'; self.Wr = rr[0]; self.R = flat(rr[1:])
        elif mn.startswith('s_'):
            self.k = 'S'
            if mn.startswith(('s_cmp', 's_cbranch', 's_branch', 's_nop', 's_endpgm', 's_setprio', 's_bitcmp', 's_sleep')):
                self.R = flat(rr)
            else:
                self.Wr = rr[0]; self.R = flat(rr[1:])
        else:
            raise ValueError(t)
    @property
    def cost(self):
        return COST[self.k]
    def ws(self):
        if self.k == 'L': return 0
        if self.t.startswith('s_nop'): return int(self.t.split()[1]) + 1
        return 1

def WV(*tags): return I('WAIT', vm=list(tags))
def WL(*tags): return I('WAIT', lg=list(tags))
def mk(x): return x if isinstance(x, I) else I(x)

class Slot:
    def __init__(self, m=None):
        self.m = mk(m) if m is not None else None
        self.sc = []; self.vec = []; self.pre = []
    def used(self):
        return sum(x.cost for x in self.vec)

class Stream:
    def __init__(self, name):
        self.name = name; self.ops = []
    def add(self, op, e, d):
        self.ops.append([mk(op), e, d])

class Prog:
    def __init__(self):
        self.slots = []; self.streams = []; self.marks = []
    def n(self): return len(self.slots)
    def mark(self, name): self.marks.append((name, len(self.slots)))
    def mfma(self, text):
        self.slots.append(Slot(text)); return len(self.slots) - 1
    def raw(self, items):
        s = Slot(None)
        if isinstance(items, str): items = [l for l in items.split('\n') if l.strip()]
        s.vec = [mk(x) for x in items]; s.raw = True
        self.slots.append(s); return len(self.slots) - 1
    def sc(self, i, op): self.slots[i].sc.append(mk(op))
    def vec(self, i, op): self.slots[i].vec.append(mk(op))
    def stream(self, name):
        s = Stream(name); self.streams.append(s); return s
    def free_sc(self, lo, hi):
        for i in range(lo, hi + 1):
            if not self.slots[i].sc and not getattr(self.slots[i], 'rsv', False): return i
        return None

    def place(self):
        for s in self.streams:
            d = 10**9
            for o in reversed(s.ops):
                d = min(d, o[2]); o[2] = d
            s.h = 0
        lastw = {}
        for i, sl in enumerate(self.slots):
            cap = 0 if sl.m is None else 8 - sl.used()
            while True:
                best = None
                for s in self.streams:
                    if s.h >= len(s.ops): continue
                    op, e, d = s.ops[s.h]
                    forced = d <= i
                    if not forced:
                        if e > i or op.cost > cap: continue
                        if op.k in ('DR',) and any(x.k in ('V', 'T', 'P') and set(x.Wr) & set(op.R) for x in sl.vec): continue
                        ok = True
                        for r in op.R:
                            if r in lastw:
                                js, kk = lastw[r]
                                if op.k == 'P' and js > i - 2: ok = False
                                if op.k in ('DW', 'GS') and js > i - 1: ok = False
                        if not ok: continue
                    else:
                        assert e <= i, (s.name, op.t, e, d, i)
                    key = (0 if forced else 1, d)
                    if best is None or key < best[0]: best = (key, s)
                if best is None: break
                s = best[1]; op = s.ops[s.h][0]; s.h += 1
                if op.k in ('S', 'W', 'B'):
                    sl.vec.append(op)
                elif op.k == 'DR' and sl.m is not None and not any(set(x.Wr) & set(op.R + op.Wr) or set(x.R) & set(op.Wr) for x in sl.vec):
                    pos = 0
                    for j, x in enumerate(sl.vec):
                        if x.k in ('DR', 'DW'): pos = j + 1
                    sl.vec.insert(pos, op)
                else:
                    sl.vec.append(op)
                cap -= op.cost
                for r in op.Wr: lastw[r] = (i, op.k)
        for s in self.streams:
            assert s.h == len(s.ops), (s.name, s.h, len(s.ops))
        self.streams = []

    def linearize(self):
        out = []
        st = dict(nds=0, dds=0, nvm=0, dvm=0)
        pend_ds = {}; pend_vm = {}; tag_ds = {}; tag_vm = {}
        self.slot_pos = []
        def need(ops):
            a = b = 0
            for x in ops:
                for r in x.R + x.Wr + x.C:
                    if r in pend_ds: a = max(a, pend_ds[r])
                    if r in pend_vm: b = max(b, pend_vm[r])
            return a, b
        def emit_wait(a, b, slot):
            parts = []
            if b > st['dvm']:
                nn = min(st['nvm'] - b, 63); parts.append(f'vmcnt({nn})'); st['dvm'] = max(st['dvm'], st['nvm'] - nn)
            if a > st['dds']:
                nn = min(st['nds'] - a, 15); parts.append(f'lgkmcnt({nn})'); st['dds'] = max(st['dds'], st['nds'] - nn)
            if parts:
                w = I('s_waitcnt ' + ' '.join(parts)); w.slot = slot; w.state = dict(st); out.append(w)
        def sym(x):
            a = b = 0
            for tg in (x.lg or []): a = max(a, st['nds'] if tg == '*' else tag_ds[tg])
            for tg in (x.vm or []): b = max(b, st['nvm'] if tg == '*' else tag_vm[tg])
            return a, b
        def emit(x, slot):
            if x.t == 'WAIT':
                emit_wait(*sym(x), slot); return
            a, b = need([x]); emit_wait(a, b, slot)
            if x.k in ('DR', 'DW'):
                st['nds'] += 1; x.seq = st['nds']
                if x.tag: tag_ds[x.tag] = x.seq
                for r in x.Wr: pend_ds[r] = x.seq
            if x.k in ('X', 'GL', 'GS'):
                st['nvm'] += 1; x.seq = st['nvm']
                if x.tag: tag_vm[x.tag] = x.seq
                for r in x.Wr: pend_vm[r] = x.seq
            if x.k == 'W':
                m = re.search(r'vmcnt\((\d+)\)', x.t)
                if m: st['dvm'] = max(st['dvm'], st['nvm'] - int(m.group(1)))
                m = re.search(r'lgkmcnt\((\d+)\)', x.t)
                if m: st['dds'] = max(st['dds'], st['nds'] - int(m.group(1)))
            x.slot = slot; x.state = dict(st); out.append(x)
        for i, sl in enumerate(self.slots):
            self.slot_pos.append(len(out))
            for x in sl.pre: emit(x, i)
            if sl.m is not None:
                emit(sl.m, i)
                look = [x for x in sl.vec if x.t != 'WAIT']
                if i + 1 < len(self.slots) and self.slots[i + 1].m is not None: look.append(self.slots[i + 1].m)
                a, b = need(look)
                rest = []
                for x in sl.sc:
                    if x.t == 'WAIT' and not rest:
                        aa, bb = sym(x); a = max(a, aa); b = max(b, bb)
                    else: rest.append(x)
                emit_wait(a, b, i)
                for x in rest: emit(x, i)
            else:
                for x in sl.sc: emit(x, i)
            for x in sl.vec: emit(x, i)
        return out

def required_ws(p, c):
    pw = set(p.Wr); w = 0
    valu = ('V', 'T', 'P')
    if p.k in valu:
        vw = {r for r in pw if r[0] != 's'}; sw = pw - vw
        if c.k == 'M' and vw & set(c.R + c.C): w = max(w, 2)
        if c.k == 'P' and vw & set(c.R): w = max(w, 2)
        if p.k == 'T' and c.k in valu and vw & set(c.R): w = max(w, 1)
        if c.k in valu and c.mn.startswith(('v_readfirstlane', 'v_readlane')) and vw & set(c.R): w = max(w, 1)
        if 'dpp' in c.t and vw & set(c.R): w = max(w, 2)
        if sw & set(c.R):
            if c.k in ('X', 'GL', 'GS'): w = max(w, 5)
            if c.k in valu: w = max(w, 2)
            if c.k in ('S', 'SL'): w = max(w, 1)
        if ('s', 'vcc') in sw and c.t.startswith('s_cbranch_vcc'): w = max(w, 5)
    if p.k == 'M':
        if c.k == 'M':
            if pw & set(c.R): w = max(w, 8)
            if pw & set(c.C) and set(c.C) != pw: w = max(w, 6)
        elif c.k in valu + ('DR', 'DW', 'X', 'GL', 'GS'):
            if pw & set(c.R + c.Wr): w = max(w, 8)
        if c.k in valu and set(p.C) & set(c.Wr): w = max(w, 3)
    if p.k == 'S' and ('s', 'm0') in pw and c.k == 'X': w = max(w, 1)
    if p.k == 'GS' and 'x4' in p.t and set(p.data) & set(c.Wr): w = max(w, 2)
    return w

def fix_hazards(lin, log=None):
    out = []
    nn = 0
    for x in lin:
        if x.k != 'L':
            dist = 0; need = 0
            for p in reversed(out[-24:]):
                if p.k == 'L': continue
                req = required_ws(p, x)
                if req > dist:
                    need = max(need, req - dist); who = p
                dist += p.ws()
                if dist >= 8: break
            if need:
                nop = I(f's_nop {need - 1}'); nop.slot = x.slot; nop.state = out[-1].state
                out.append(nop); nn += 1
                if log is not None: log.append(f'slot {x.slot}: nop {need} between [{who.t}] and [{x.t}]')
        out.append(x)
    return out

def check_lds(lin):
    bar = dict(dds=0, dvm=0)
    reads = {}
    writes = {}
    errs = []
    for x in lin:
        if x.k == 'B':
            bar = dict(x.state)
        if x.lds is None: continue
        for rg, gen in x.lds:
            done = lambda k, s: s <= (bar['dvm'] if k == 'X' else bar['dds'])
            if x.k == 'DR':
                ws_ = writes.get(rg, [])
                if not ws_ or ws_[-1][0] != gen: errs.append(f'read of {rg} gen {gen} but last write {ws_[-1] if ws_ else None}: {x.t}')
                for g, k, s in ws_:
                    if g == gen and not done(k, s): errs.append(f'slot {x.slot}: read of {rg}/{gen} before ready: {x.t}'); break
                reads.setdefault(rg, []).append((gen, x.seq))
            else:
                for g, s in reads.get(rg, []):
                    if g == gen: errs.append(f'write {rg}/{gen} after read of same gen: {x.t}'); break
                    if s > bar['dds']: errs.append(f'slot {x.slot}: write {rg}/{gen} before reads of {g} retired: {x.t}'); break
                reads[rg] = [(g, s) for g, s in reads.get(rg, []) if s > bar['dds']]
                for g, k, s in writes.get(rg, []):
                    if g != gen and not done(k, s): errs.append(f'slot {x.slot}: write {rg}/{gen} before write {g} done: {x.t}'); break
                writes[rg] = [w for w in writes.get(rg, []) if w[0] == gen] + [(gen, x.k, x.seq)]
    return errs

def estimate(prog, lin):
    per = {}
    for x in lin:
        per.setdefault(x.slot, []).append(x)
    cyc = []
    for i, sl in enumerate(prog.slots):
        xs = per.get(i, [])
        vec = sum(x.cost for x in xs)
        nsc = sum(x.ws() for x in xs if x.k in ('S', 'W', 'B', 'SL'))
        if sl.m is not None:
            pen = 0; seenv = False; seenvec = False
            for x in xs:
                if x.k in ('V', 'T', 'P'): seenv = True
                if x.k == 'DR' and seenv: pen += 8
            cyc.append(max(16, 8 + vec + 4 * max(0, nsc - 1) + pen))
        else:
            cyc.append(vec + 4 * nsc)
    res = []
    mk_ = prog.marks + [('end', len(prog.slots))]
    for (a, i), (_, j) in zip(mk_, mk_[1:]):
        nm = sum(1 for s in prog.slots[i:j] if s.m is not None)
        res.append((a, nm, sum(cyc[i:j]), sum(cyc[i:j]) - 16 * nm))
    return res, cyc

class Interp:
    def __init__(self, tid0, wg):
        import numpy as np
        self.np = np
        self.v = {0: np.arange(tid0, tid0 + 64, dtype=np.int64)}; self.a = {}
        self.s = {2: wg}; self.scc = 0
    def val(self, t):
        r = regs_of(t)
        if r:
            k, i = r[0]
            return {'v': self.v, 'a': self.a, 's': self.s}[k][i]
        return int(t, 0) & 0xffffffff
    def run(self, lines):
        M = 0xffffffff
        for x in lines:
            t = x.t if isinstance(x, I) else x.strip()
            sp = t.split(None, 1); mn = sp[0].replace('_e32', '').replace('_e64', '')
            if not mn.startswith(('v_', 's_')) or len(sp) < 2 or mn.startswith(('s_cmp', 's_cbr', 's_wait', 's_nop')): continue
            ops = [o.strip() for o in sp[1].split(',')]
            try:
                a = [self.val(o) for o in ops[1:]]
            except (KeyError, ValueError):
                d = regs_of(ops[0])
                for k, i in d: {'v': self.v, 'a': self.a, 's': self.s}[k].pop(i, None)
                continue
            f = {
                'and_b32': lambda: a[0] & a[1], 'or_b32': lambda: a[0] | a[1], 'xor_b32': lambda: a[0] ^ a[1],
                'lshlrev_b32': lambda: a[1] << a[0], 'lshrrev_b32': lambda: a[1] >> a[0],
                'lshl_b32': lambda: a[0] << a[1], 'lshr_b32': lambda: a[0] >> a[1],
                'add_u32': lambda: a[0] + a[1], 'sub_u32': lambda: a[0] - a[1], 'add_i32': lambda: a[0] + a[1],
                'mov_b32': lambda: a[0], 'movk_i32': lambda: a[0], 'mul_i32': lambda: a[0] * a[1], 'mul_u32_u24': lambda: a[0] * a[1],
                'lshl_or_b32': lambda: (a[0] << a[1]) | a[2], 'lshl_add_u32': lambda: (a[0] << a[1]) + a[2],
                'and_or_b32': lambda: (a[0] & a[1]) | a[2], 'or3_b32': lambda: a[0] | a[1] | a[2],
                'add3_u32': lambda: a[0] + a[1] + a[2], 'xad_u32': lambda: (a[0] ^ a[1]) + a[2],
                'add_lshl_u32': lambda: (a[0] + a[1]) << a[2], 'mad_u32_u24': lambda: a[0] * a[1] + a[2],
                'accvgpr_write_b32': lambda: a[0], 'accvgpr_read_b32': lambda: a[0],
                'readfirstlane_b32': lambda: int(a[0][0]),
                'bfe_u32': (lambda: (a[0] >> a[1]) & ((1 << a[2]) - 1)) if mn[0] == 'v' else (lambda: (a[0] >> (a[1] & 31)) & ((1 << (a[1] >> 16)) - 1)),
            }.get(mn[2:])
            d = regs_of(ops[0])
            if f is None or not d:
                for k, i in d: {'v': self.v, 'a': self.a, 's': self.s}[k].pop(i, None)
                continue
            r = f() & M
            k, i = d[0]
            if k in 'va' and not hasattr(r, 'shape'): r = self.np.full(64, r, dtype=self.np.int64)
            {'v': self.v, 'a': self.a, 's': self.s}[k][i] = r
```

```python
import sys, math
from gcore import *
from asmlib import HEADER_COMMENT, kernel_open, kernel_desc, KNAME, vr, ar, sr

MF = 'v_mfma_f32_16x16x32_bf16'
RNAME = 'reduce_partials_kernel'
OPT = dict(stamps=0, dbg='', fb_force=0)

SX, SK, SV, SWQ, SWO, SWS, SOUT = 4, 8, 12, 16, 20, 24, 28
sW, sLO, sHI, sH, sBP, sBR, sROT = 3, 62, 63, 64, 65, 66, 67
sDMA, sDMAX, sDMAO, sRQ, sRO, sSOFF, sKVO, sSC, sWSB, sST, sFB, sBAD, sT = 68, 69, 70, 71, 72, 73, 74, 75, 76, 77, 78, 80, 82
sLIM = 79
sSTAMP = 84
def C(cb, t, qt): return 48 * cb + 12 * t + 4 * qt
def O(j, dt): return 32 * j + 4 * dt
def S(b, kt=0): return 192 + 8 * b + 4 * kt
def P(b): return 208 + 4 * b
def NM(j): return 216 + 4 * j
vKA, vVA, vKV = 240, 244, 252
vWA, vXA, vWD, vXD, vKM = 192, 200, 204, 208, 212
vL = 216; T0 = 217
vOA, vRL, vEW, vER, vOD = 240, 244, 250, 251, 252
def X(kc, ks, qt): return 24 * kc + 12 * ks + 4 * qt
def WF(b, ks, hf=0): return 192 + 8 * b + 4 * ks + 2 * hf
def Q(j, ks): return 24 * (2 * (j // 3) + (ks >> 1)) + 12 * (ks & 1) + 4 * (j % 3)
def KF(kt, ks): return 96 + 16 * kt + 4 * ks
def KMF(ks): return 128 + 4 * ks
def VF(dt, hf=0): return 144 + 4 * dt + 2 * hf
def LA(j): return 216 + 4 * j
aONE = 240
aOD, aOA, aL16 = 244, 245, 246
def PF(g, ks, qt): return 96 + 24 * g + 12 * ks + 4 * qt

def slot_off(n): return (n & 1) * 81920 + (n >> 1) * 8192
def slot_reg(n, gen): return [((n, 0), gen), ((n, 1), gen)]

def dma(voff, srd, soff, off, tag, lds):
    return I(f'buffer_load_dwordx4 v{voff}, {sr(srd,4)}, {soff} offen offset:{off} lds', tag=tag, lds=lds)

def setup_attn(L, t):
    return f"""
    v_lshrrev_b32 v{t}, 4, v{L}
    v_and_b32 v{t+1}, 15, v{L}
    v_lshlrev_b32 v{t+2}, 1, v{t}
    v_xor_b32 v{t+2}, v{t+1}, v{t+2}
    v_lshlrev_b32 v{t+2}, 4, v{t+2}
    v_lshl_or_b32 v{t+2}, v{t}, 8, v{t+2}
    s_lshl_b32 s{sT}, s{sBP}, 1
    s_add_u32 s{sT}, s{sT}, s{sLO}
    s_lshl_b32 s{sT}, s{sT}, 3
    s_add_u32 s{sT}, s{sT}, s{sH}
    s_lshl_b32 s{sT}, s{sT}, 5
    s_add_u32 s{sT}, s{sT}, s{sHI}
    s_lshl_b32 s{sT}, s{sT}, 12
    v_add_u32 v{vKV}, s{sT}, v{t+2}
    v_xor_b32 v{vKV+1}, 0x80, v{vKV}
    v_xor_b32 v{vKV+2}, 16, v{vKV}
    v_xor_b32 v{vKV+3}, 0x90, v{vKV}
    s_mul_i32 s{sT}, s{sLO}, 40960
    s_and_b32 s{sT+1}, s{sROT}, 1
    s_lshl_b32 s{sT+1}, s{sT+1}, 7
    s_add_u32 s{sT+1}, s{sT+1}, s{sT}
    v_bfe_u32 v{t+2}, v{L}, 4, 1
    v_lshrrev_b32 v{t+3}, 5, v{L}
    v_lshl_or_b32 v{t}, v{t+2}, 1, v{t+3}
    v_and_b32 v{t+2}, 7, v{L}
    v_bfe_u32 v{t+3}, v{L}, 3, 1
    v_lshl_or_b32 v{t+2}, v{t+2}, 1, v{t+3}
    v_xor_b32 v{t+2}, v{t+2}, v{t}
    v_lshlrev_b32 v{t+2}, 4, v{t+2}
    v_lshl_or_b32 v{t+2}, v{t+1}, 8, v{t+2}
    v_xor_b32 v{vKA}, s{sT+1}, v{t+2}
    v_xor_b32 v{vKA+1}, 64, v{vKA}
    v_xor_b32 v{vKA+2}, 0x80, v{vKA}
    v_xor_b32 v{vKA+3}, 0xc0, v{vKA}
    v_and_b32 v{t+1}, 3, v{L}
    v_lshlrev_b32 v{t+2}, 1, v{t+1}
    v_xor_b32 v{t+2}, v{t+2}, v{t}
    v_lshlrev_b32 v{t+2}, 4, v{t+2}
    v_lshl_or_b32 v{t+2}, v{t+1}, 8, v{t+2}
    v_xor_b32 v{vKM}, s{sT+1}, v{t+2}
    v_xor_b32 v{vKM+1}, 64, v{vKM}
    v_xor_b32 v{vKM+2}, 0x80, v{vKM}
    v_xor_b32 v{vKM+3}, 0xc0, v{vKM}
    s_add_u32 s{sT}, s{sT}, 81920
    v_bfe_u32 v{t}, v{L}, 2, 3
    v_lshrrev_b32 v{t+1}, 5, v{L}
    v_lshl_or_b32 v{t}, v{t}, 1, v{t+1}
    v_bfe_u32 v{t+1}, v{L}, 1, 1
    v_xor_b32 v{t}, v{t}, v{t+1}
    v_and_b32 v{t+1}, 1, v{L}
    v_lshl_or_b32 v{t}, v{t}, 1, v{t+1}
    v_lshlrev_b32 v{t}, 3, v{t}
    v_lshrrev_b32 v{t+1}, 2, v{L}
    v_lshl_or_b32 v{t}, v{t+1}, 8, v{t}
    v_add_u32 v{vVA}, s{sT}, v{t}
    """ + ''.join(f'v_xor_b32 v{vVA+d}, {hex(d<<5)}, v{vVA}\n' for d in range(1, 8))

def srd(dst, a, b, size):
    s = f's_cselect_b32 s{dst}, s{b}, s{a}\ns_cselect_b32 s{dst+1}, s{b+1}, s{a+1}\n' if b is not None else f's_mov_b32 s{dst}, s{a}\ns_mov_b32 s{dst+1}, s{a+1}\n'
    return s + f's_mov_b32 s{dst+2}, {size}\ns_mov_b32 s{dst+3}, 0x20000\n'

def stage_of(s):
    return (s & 1, s >> 1) if s < 16 else (2 + (s - 16) // 8, s % 8)
def wslot(s): return 5 + (s + 3) % 5
def xslot(kc): return 2 + kc % 3
def kvslot(name): return 2 * (int(name[1:]) % 5) + (name[0] == 'V')

def w_group(s):
    cb, kc = stage_of(s); n = wslot(s)
    return ([f's_add_u32 m0, s{sDMA}, {slot_off(n)}', f's_xor_b32 s{sSOFF}, s{sRQ}, {kc*524288 + cb*128}'],
            [dma(vWD + j, SWQ, f's{sSOFF}', 1024 * j, f'W{s}', slot_reg(n, f'W{s}')) for j in range(4)])
def x_piece(kc, j):
    n = xslot(kc)
    return ([f's_add_u32 m0, s{sDMAX}, {slot_off(n) - 128*kc}'], dma(vXD + j, SX, '0', 1024 * j + 128 * kc, f'x{kc}', slot_reg(n, f'x{kc}')))
def kv_group(name):
    n = kvslot(name); tile = int(name[1:])
    return ([f's_add_u32 m0, s{sDMA}, {slot_off(n)}', f's_mov_b32 s{sKVO}, {tile*8192}'],
            [dma(vKV + j, SK if name[0] == 'K' else SV, f's{sKVO}', 1024 * j, name, slot_reg(n, name)) for j in range(4)])
OPL = [(1, 0), (1, 1), (2, 0), (2, 1)]
def o_place(s): return OPL[s % 4]
def o_off(s): idx, hp = o_place(s); return hp * 40960 + idx * 8192
def o_reg(s): idx, hp = o_place(s); return [((2 * idx, hp), f'O{s}'), ((2 * idx + 1, hp), f'O{s}')]
def o_group(s):
    ps, kc = s >> 3, s & 7
    return ([f's_add_u32 m0, s{sDMAO}, {o_off(s)}', f's_xor_b32 s{sSOFF}, s{sRO}, {kc*65536 + ps*128}'],
            [dma(vOD + j, SWO, f's{sSOFF}', 1024 * j, f'O{s}', o_reg(s)) for j in range(4)])

def w_reads(H):
    s, t = H >> 2, H & 3; n = wslot(s)
    return [I(f'ds_read_b64_tr_b16 {ar(WF(H%3,ks,hf),2)}, v{vWA + 4*(n&1) + t} offset:{(n>>1)*8192 + ks*4096 + hf*512}', tag=f'wr{H}', lds=slot_reg(n, f'W{s}'))
            for ks in range(2) for hf in range(2)]
def o_reads(H):
    s, t = H >> 2, H & 3
    return [I(f'ds_read_b64_tr_b16 {ar(WF(H%3,ks,hf),2)}, v{vOA + t} offset:{o_off(s) + ks*4096 + hf*2048}', tag=f'or{H}', lds=o_reg(s))
            for ks in range(2) for hf in range(2)]
def x_reads(kc):
    n = xslot(kc)
    return [I(f'ds_read_b128 {ar(X(kc,ks,qt),4)}, v{vXA + 2*(n&1) + ks} offset:{(n>>1)*8192 + qt*2048}', tag=f'xr{kc}', lds=slot_reg(n, f'x{kc}'))
            for qt in range(3) for ks in range(2)]
def k_reads(i):
    n = kvslot(f'K{i}')
    return [I(f'ds_read_b128 {ar(KF(kt,ks),4)}, v{vKA + ks} offset:{(n>>1)*8192 + kt*4096}', tag=f'kr{i}', lds=slot_reg(n, f'K{i}'))
            for kt in range(2) for ks in range(4)]
def v_reads(i):
    n = kvslot(f'V{i}')
    return [I(f'ds_read_b64_tr_b16 {ar(VF(dt,hf),2)}, v{vVA + dt} offset:{(n>>1)*8192 + hf*4096}', tag=f'vr{i}', lds=slot_reg(n, f'V{i}'))
            for dt in range(8) for hf in range(2)]

nstamp = [0]
def stamp():
    if not OPT['stamps']: return []
    k = nstamp[0]; nstamp[0] += 1
    return [f's_memtime {sr(sSTAMP + 2*k, 2)}', 's_waitcnt lgkmcnt(0)']

def put_reads(p, base, reads, limit=5):
    free = [k for k in range(limit) if p.slots[base + k].used() == 0]
    if len(free) >= 4: pos = free[:4]
    elif len(free) == 3: pos = [free[0], free[0], free[1], free[2]]
    else: pos = [free[0], free[0], free[1], free[1]]
    for k, r in zip(pos, reads): p.vec(base + k, r)

def gen_main():
    nstamp[0] = 0
    p = Prog()
    L, t = vL, T0
    p.mark('prolog')
    pro = f"""
    s_cmp_ge_u32 s2, 256
    s_cbranch_scc1 L_exit
    s_load_dwordx16 s[36:51], s[0:1], 0
    s_load_dwordx8 s[52:59], s[0:1], 64
    s_load_dwordx2 s[60:61], s[0:1], 96
    v_lshrrev_b32 v1, 6, v0
    v_and_b32 v{L}, 63, v0
    v_readfirstlane_b32 s{sW}, v1
    s_and_b32 s{sBR}, s2, 1
    s_bfe_u32 s{sH}, s2, 0x20001
    s_bfe_u32 s{sT}, s2, 0x10003
    s_lshl_b32 s{sH}, s{sH}, 1
    s_add_u32 s{sH}, s{sH}, s{sT}
    s_lshr_b32 s{sBP}, s2, 4
    s_and_b32 s{sROT}, s{sBP}, 3
    s_and_b32 s{sLO}, s{sW}, 1
    s_lshr_b32 s{sHI}, s{sW}, 1
    s_lshl_b32 s{sRQ}, s{sROT}, 7
    s_mul_i32 s{sT}, s{sLO}, 40960
    s_lshl_b32 s{sDMA}, s{sHI}, 12
    s_add_u32 s{sDMA}, s{sDMA}, s{sT}
    s_mul_i32 s{sDMAX}, s{sHI}, 3072
    s_add_u32 s{sDMAX}, s{sDMAX}, s{sT}
    v_lshrrev_b32 v{t}, 3, v{L}
    v_and_b32 v{t+1}, 7, v{L}
    v_lshrrev_b32 v{t+2}, 4, v{L}
    v_xor_b32 v{t+2}, v{t+1}, v{t+2}
    v_lshlrev_b32 v{t+2}, 4, v{t+2}
    v_lshl_or_b32 v{t+2}, v{t}, 10, v{t+2}
    s_lshl_b32 s{sT}, s{sBP}, 2
    s_lshl_b32 s{sT+1}, s{sLO}, 1
    s_add_u32 s{sT}, s{sT}, s{sT+1}
    s_add_u32 s{sT}, s{sT}, s{sHI}
    s_mul_i32 s{sT}, s{sT}, 24576
    s_lshl_b32 s{sT+1}, s{sHI}, 6
    v_xor_b32 v{t+2}, s{sT+1}, v{t+2}
    v_add_u32 v{vXD}, s{sT}, v{t+2}
    v_xor_b32 v{vXD+1}, 64, v{vXD}
    v_add_u32 v{vXD+1}, 7168, v{vXD+1}
    v_add_u32 v{vXD+2}, 14336, v{vXD}
    v_bfe_u32 v{t+2}, v{L}, 4, 1
    v_lshlrev_b32 v{t+2}, 1, v{t+2}
    v_xor_b32 v{t+2}, v{t+1}, v{t+2}
    v_lshlrev_b32 v{t+2}, 4, v{t+2}
    v_lshl_or_b32 v{t+2}, v{t}, 13, v{t+2}
    s_lshl_b32 s{sT}, s{sHI}, 8
    s_add_u32 s{sT}, s{sT}, s{sH}
    s_lshl_b32 s{sT}, s{sT}, 1
    s_add_u32 s{sT}, s{sT}, s{sLO}
    s_lshl_b32 s{sT}, s{sT}, 9
    v_add_u32 v{vWD}, s{sT}, v{t+2}
    v_xor_b32 v{vWD+1}, 64, v{vWD}
    v_add_u32 v{vWD+2}, 129024, v{vWD}
    v_add_u32 v{vWD+3}, 193536, v{vWD+1}
    v_add_u32 v{vWD+1}, 64512, v{vWD+1}
    s_cmp_eq_u32 s{sBR}, 1
    s_waitcnt lgkmcnt(0)
    """ + srd(SX, 36, 46, 1572864) + srd(SWQ, 42, 52, 4194304) + srd(SK, 38, 48, 33554432) + srd(SV, 40, 50, 33554432) + srd(SWO, 44, 54, 4194304)
    items = [l for l in pro.split('\n') if l.strip()] + stamp()
    def xall(kc):
        o = list(x_piece(kc, 0)[0]) + ['s_nop 0']
        return o + [x_piece(kc, j)[1] for j in range(3)]
    def wall(s): a, b = w_group(s); return a + b
    items += xall(0) + wall(0) + wall(1) + xall(1) + wall(2) + wall(3) + xall(2) + wall(4)
    rest = srd(SWS, 60, None, 25165824) + f"""
    s_mov_b32 s{sSC}, {hex(SCALE)}
    s_mov_b32 s{sFB}, 0
    s_mov_b32 s{sLIM}, 0x4e800000
    s_mul_i32 s{sT}, s{sHI}, 40960
    v_bfe_u32 v{t}, v{L}, 3, 2
    v_and_b32 v{t+1}, 3, v{L}
    v_lshl_or_b32 v{t}, v{t}, 2, v{t+1}
    v_lshlrev_b32 v{t}, 3, v{t}
    v_bfe_u32 v{t+1}, v{L}, 2, 2
    v_lshl_or_b32 v{t}, v{t+1}, 7, v{t}
    v_lshrrev_b32 v{t+1}, 4, v{L}
    v_lshl_or_b32 v{t+2}, v{t+1}, 10, v{t}
    v_add_u32 v{vWA}, s{sT}, v{t+2}
    v_xor_b32 v{vWA+1}, 32, v{vWA}
    v_xor_b32 v{vWA+2}, 64, v{vWA}
    v_xor_b32 v{vWA+3}, 0x60, v{vWA}
    v_add_u32 v{vWA+4}, 81920, v{vWA}
    v_add_u32 v{vWA+5}, 81920, v{vWA+1}
    v_add_u32 v{vWA+6}, 81920, v{vWA+2}
    v_add_u32 v{vWA+7}, 81920, v{vWA+3}
    s_lshl_b32 s{sT}, s{sT}, 1
    v_lshl_or_b32 v{t+2}, v{t+1}, 9, v{t}
    v_add_u32 v{t+2}, s{sT}, v{t+2}
    v_accvgpr_write_b32 a{aOA}, v{t+2}
    s_mul_i32 s{sT}, s{sLO}, 40960
    v_bfe_u32 v{t}, v{L}, 1, 3
    v_xor_b32 v{t}, v{t}, v{t+1}
    v_lshlrev_b32 v{t}, 4, v{t}
    v_and_b32 v{t+2}, 15, v{L}
    v_lshl_or_b32 v{t}, v{t+2}, 7, v{t}
    v_add_u32 v{vXA}, s{sT}, v{t}
    v_xor_b32 v{vXA+1}, 64, v{vXA}
    v_add_u32 v{vXA+2}, 81920, v{vXA}
    v_add_u32 v{vXA+3}, 81920, v{vXA+1}
    v_lshlrev_b32 v{t+1}, 1, v{t+1}
    v_and_b32 v{t}, 7, v{L}
    v_xor_b32 v{t}, v{t}, v{t+1}
    v_lshlrev_b32 v{t}, 4, v{t}
    v_lshrrev_b32 v{t+1}, 3, v{L}
    v_lshl_or_b32 v{t}, v{t+1}, 10, v{t}
    s_lshl_b32 s{sT}, s{sH}, 4
    s_add_u32 s{sT}, s{sT}, s{sHI}
    s_lshl_b32 s{sT}, s{sT}, 6
    s_add_u32 s{sT}, s{sT}, s{sLO}
    s_lshl_b32 s{sT}, s{sT}, 9
    v_add_u32 v{t}, s{sT}, v{t}
    v_accvgpr_write_b32 a{aOD}, v{t}
    v_lshlrev_b32 v{t}, 4, v{L}
    v_accvgpr_write_b32 a{aL16}, v{t}
    v_mov_b32 v{t}, 0x3f803f80
    v_accvgpr_write_b32 a{aONE}, v{t}
    v_accvgpr_write_b32 a{aONE+1}, v{t}
    v_accvgpr_write_b32 a{aONE+2}, v{t}
    v_accvgpr_write_b32 a{aONE+3}, v{t}
    s_mul_i32 s{sDMAO}, s{sLO}, 81920
    s_lshl_b32 s{sT}, s{sHI}, 12
    s_add_u32 s{sDMAO}, s{sDMAO}, s{sT}
    s_lshl_b32 s{sRO}, s{sLO}, 2
    s_and_b32 s{sT}, s{sROT}, 2
    s_or_b32 s{sRO}, s{sRO}, s{sT}
    s_lshl_b32 s{sRO}, s{sRO}, 16
    s_or_b32 s{sRO}, s{sRO}, s{sRQ}
    s_lshl_b32 s{sT}, s{sBR}, 4
    s_add_u32 s{sT}, s{sT}, s{sBP}
    s_lshl_b32 s{sT}, s{sT}, 3
    s_add_u32 s{sT}, s{sT}, s{sH}
    s_lshl_b32 s{sT}, s{sT}, 2
    s_add_u32 s{sT}, s{sT}, s{sW}
    s_mul_i32 s{sWSB}, s{sT}, 24576
    """ + setup_attn(L, t)
    items += [l for l in rest.split('\n') if l.strip()]
    setup_items = list(items)
    xr = x_reads(0)
    items += [WV('x0', 'W0'), 's_barrier'] + stamp() + xr[:2] + w_reads(0) + xr[2:] + w_reads(1)
    p.raw(items)

    p.mark('qproj')
    Q0 = p.n()
    for s in range(32):
        cb, kc = stage_of(s)
        for tt in range(4):
            H = 4 * s + tt
            for qt in range(3):
                for ks in range(2):
                    d = vr(C(cb, tt, qt), 4)
                    p.mfma(f'{MF} {d}, {ar(WF(H%3,ks),4)}, {ar(X(kc,ks,qt),4)}, {d if (kc or ks) else 0}')
    qs = lambda H, k=0: Q0 + 6 * H + k
    p.mark('attn0')
    A0 = p.n()
    mslot = {}; qk = {}; pv = {}; seg0 = {}
    def emit_max(j):
        mslot[j] = p.n()
        for ks in range(4):
            d = vr(NM(j), 4)
            p.mfma(f'{MF} {d}, {ar(KMF(ks),4)}, {ar(Q(j,ks),4)}, {d if ks else 0}')
    def emit_qk(G):
        j = G % 6; qk[G] = p.n()
        for kt in range(2):
            for ks in range(4):
                d = vr(S(G & 1, kt), 4)
                p.mfma(f'{MF} {d}, {ar(KF(kt,ks),4)}, {ar(Q(j,ks),4)}, {d if ks else vr(NM(j),4)}')
    def emit_pv(G):
        j = G % 6; pv[G] = p.n()
        for dt in range(8):
            d = vr(O(j, dt), 4)
            p.mfma(f'{MF} {d}, {ar(VF(dt),4)}, {vr(P(G&1),4)}, {d if G >= 6 else 0}')
        d = ar(LA(j), 4)
        p.mfma(f'{MF} {d}, {ar(aONE,4)}, {vr(P(G&1),4)}, {d if G >= 6 else 0}')
    for j in range(6): emit_max(j)
    FBJ = p.raw(['L_attn:'])
    emit_qk(0)
    for G in range(96):
        if G % 6 == 0 and G: p.mark(f'tile{G//6}')
        seg0[G] = p.n()
        if G + 1 < 96: emit_qk(G + 1)
        if G >= 1: emit_pv(G - 1)
    seg0[96] = p.n()
    emit_pv(95)
    p.mark('oproj')
    GAP = p.raw(stamp())
    O0 = p.n()
    def OFr(kc, ks, qt):
        if kc < 4: return vr(O(3 * (kc >> 1) + qt, 4 * (kc & 1) + 2 * ks), 4)
        return ar(PF(kc - 4, ks, qt), 4)
    def ACC(ps, tt, qt):
        if ps & 1 == 0: return 192 + 12 * tt + 4 * qt
        return O(qt, 2 * tt + 1)
    for s in range(32):
        ps, kc = s >> 3, s & 7
        for tt in range(4):
            H = 4 * s + tt
            for qt in range(3):
                for ks in range(2):
                    d = vr(ACC(ps, tt, qt), 4)
                    p.mfma(f'{MF} {d}, {ar(WF(H%3,ks),4)}, {OFr(kc,ks,qt)}, {d if (kc or ks) else 0}')
    os_ = lambda H, k=0: O0 + 6 * H + k
    p.mark('tail')
    END = p.raw([])

    early = [(nm, j) for nm in ('K0', 'V0', 'K1', 'V1', 'K2') for j in range(4)]
    late = {28: 'V2', 29: 'K3', 30: 'V3', 31: 'K4', 32: 'V4'}
    for s in range(33):
        b = qs(4 * s - 1)
        extras = []
        if s < 10:
            kc = s // 2 + 3
            extras = [x_piece(kc, 0)] if s % 2 == 0 else [x_piece(kc, 1), x_piece(kc, 2)]
        elif s < 28:
            nm, j = early.pop(0); a, bb = kv_group(nm); extras = [(a, bb[j])]
        if s == 0:
            a, bb = kv_group('K0'); early = early[2:]
            p.sc(b + 7, a[0]); p.sc(b + 8, a[1]); p.vec(b + 9, bb[0]); p.vec(b + 15, bb[1])
        else:
            a, bb = w_group(s + 4) if s < 28 else kv_group(late[s])
            p.sc(b, 's_barrier'); p.sc(b + 1, a[0]); p.sc(b + 2, a[1])
            pos = {0: (3, 9, 15, 21), 1: (3, 8, 13, 17), 2: (3, 7, 10, 14)}[len(extras)]
            for k, d in zip(pos, bb): p.vec(b + k, d)
        if len(extras) == 1:
            for k, x in enumerate(extras[0][0]): p.sc(b + 19 + k, x)
            p.vec(b + 21, extras[0][1])
        elif len(extras) == 2:
            p.sc(b + 15, extras[0][0][0]); p.vec(b + 17, extras[0][1]); p.vec(b + 21, extras[1][1])
        if s + 1 < 32:
            tags = [f'W{s+1}']
            if (s + 1) % 2 == 1 and (s + 2) // 2 < 8: tags.append(f'x{(s+2)//2}')
            if s + 1 == 30: tags += ['K0', 'V0']
            p.sc(b + 17, WV(*tags)); p.sc(b + 18, 's_barrier')
    assert not early
    for H in range(128):
        if H + 2 < 128: put_reads(p, qs(H), w_reads(H + 2))
        if H + 1 < 128: p.sc(qs(H, 5), WL(f'wr{H+1}', *([f'xr{(H+1)//8}'] if (H + 1) % 8 == 0 and H < 63 else [])))
    st = p.stream('xr')
    for kc in range(1, 8):
        for m, r in enumerate(x_reads(kc)): st.add(r, qs(8 * kc - 6, 4) + 4 * m, qs(8 * kc - 2, 5))
    st = p.stream('k0')
    km = [I(f'ds_read_b128 {ar(KMF(ks),4)}, v{vKM+ks}', tag='km', lds=slot_reg(0, 'K0')) for ks in range(4)]
    for m, r in enumerate(km + k_reads(0)): st.add(r, qs(120) + 2 * m, A0 - 4 + max(0, m - 3))
    st = p.stream('v0')
    for m, r in enumerate(v_reads(0)): st.add(r, A0 + m, FBJ - 1)
    for cb in range(4):
        last = {0: 14, 1: 15, 2: 23, 3: 31}[cb]
        st = p.stream(f'qe{cb}'); st2 = p.stream(f'qw{cb}') if cb < 2 else st
        order = [(s2, qt) for s2 in range(2) for qt in range(3)] if cb < 3 else [(0, 0), (0, 1), (0, 2), (1, 0), (1, 1), (1, 2)]
        for s2, qt in order:
            j = 3 * (cb >> 1) + qt
            a, b = C(cb, 2 * s2, qt), C(cb, 2 * s2 + 1, qt)
            dl = mslot[j] - 1
            d1 = min(dl, qs(4 * (25 + cb)) - 1) if cb < 2 else dl
            for base, tt in ((a, 2 * s2), (b, 2 * s2 + 1)):
                e = qs(4 * last + tt, 2 * qt + 1) + 5
                for r in range(4): st.add(f'v_mul_f32 v{base+r}, s{sSC}, v{base+r}', e, d1)
                st.add(f'v_cvt_pk_bf16_f32 v{base}, v{base}, v{base+1}', e, d1)
                st.add(f'v_cvt_pk_bf16_f32 v{base+1}, v{base+2}, v{base+3}', e, d1)
            st.add(f'v_permlane16_swap_b32 v{a}, v{b}', e, d1)
            st.add(f'v_permlane16_swap_b32 v{a+1}, v{b+1}', e, d1)
            q = Q(j, 2 * (cb & 1) + s2)
            assert q == X(cb, s2, qt)
            for r, src in enumerate((a, a + 1, b, b + 1)):
                st2.add(f'v_accvgpr_write_b32 a{q+r}, v{src}', max(e, qs(4 * (25 + cb))), dl)
    st = p.stream('nm')
    for j in range(6):
        n = NM(j); e = min(mslot[j] + 3 + 5, FBJ - 1); dl = FBJ - 1
        for x in (f'v_max3_f32 v{n}, v{n}, v{n+1}, v{n+2}', f'v_min_f32_e64 v{n+1}, -v{n}, -v{n+3}', f'v_min_f32_e64 v{n+2}, -v{n}, -v{n+3}',
                  f'v_mov_b32 v{n}, v{n+1}', f'v_mov_b32 v{n+3}, v{n+1}'):
            st.add(x, e, dl)

    def put_group(base, grp, step=4):
        a, bb = grp
        p.sc(base, a[0]); p.sc(base + 1, a[1])
        for k, d in enumerate(bb): p.vec(base + 2 + step * k, d)
    for i in range(16):
        G = 6 * i
        if i >= 1:
            b = pv[G - 1]
            p.sc(b - 2, WV(f'V{i}')); p.sc(b - 1, 's_barrier')
            vr_ = v_reads(i)
            for dt in range(8):
                p.vec(b + 2 * dt, vr_[2 * dt]); p.vec(b + 2 * dt, vr_[2 * dt + 1])
        else:
            p.sc(seg0[1] + 2, WL('kr0', 'km')); p.sc(seg0[1] + 3, 's_barrier')
        b = qk[G + 5]
        wt = [WV(f'K{i+1}')] if i < 15 else [WV('O0', 'PT')]
        p.sc(b - 2, wt[0]); p.sc(b - 2, WL(f'vr{i}')); p.sc(b - 1, 's_barrier')
        if i < 15:
            for m, r in enumerate(k_reads(i + 1)): p.vec(b + 2 * m, r)
        if i <= 10:
            put_group(seg0[G + 2], kv_group(f'K{i+5}'))
            put_group(seg0[G + 5], kv_group(f'V{i+5}'))
        elif i <= 12:
            p.sc(seg0[G + 2], WL(f'vr{i}')); p.sc(seg0[G + 2] + 1, 's_barrier')
            put_group(seg0[G + 2] + 2, o_group(2 * (i - 11)), 3)
            put_group(seg0[G + 3], o_group(2 * (i - 11) + 1), 3)
        elif i == 13:
            a = [f's_add_u32 m0, s{sDMA}, {slot_off(6)}', f's_xor_b32 s{sSOFF}, s{sRO}, s{sT}']
            p.sc(seg0[G + 2] - 3, f's_lshr_b32 s{sT}, s{sBP}, 2'); p.sc(seg0[G + 2] - 2, f's_add_u32 s{sT}, s{sT}, 4'); p.sc(seg0[G + 2] - 1, f's_lshl_b32 s{sT}, s{sT}, 16')
            put_group(seg0[G + 2], (a, [dma(vOD + j, SWO, f's{sSOFF}', 1024 * j, 'PT', slot_reg(6, 'PT')) for j in range(4)]))
    st = p.stream('oaddr')
    e, dl = seg0[66] + 1, seg0[68] + 2
    st.add(f'v_accvgpr_read_b32 v{vOD}, a{aOD}', e, dl)
    for j in range(1, 4): st.add(f'v_add_u32 v{vOD+j}, {7168*j}, v{vOD}', e, dl)
    e, dl = seg0[89], seg0[95]
    st.add(f'v_accvgpr_read_b32 v{vOA}, a{aOA}', e, dl)
    for j in range(1, 4): st.add(f'v_xor_b32 v{vOA+j}, {32*j}, v{vOA}', e, dl)
    st = p.stream('exp')
    for G in range(96):
        nxt = qk.get(G + 2)
        ec = seg0[G] if G >= 2 else 0
        for kt in range(2):
            s_ = S(G & 1, kt); e = qk[G] + 4 * kt + 3 + 5
            dl = pv[G] - 2
            if nxt is not None: dl = min(dl, nxt + 4 * kt - 1)
            for r in range(4): st.add(f'v_exp_f32 v{s_+r}, v{s_+r}', e, dl)
            st.add(f'v_cvt_pk_bf16_f32 v{P(G&1)+2*kt}, v{s_}, v{s_+1}', max(e, ec), dl)
            st.add(f'v_cvt_pk_bf16_f32 v{P(G&1)+2*kt+1}, v{s_+2}, v{s_+3}', max(e, ec), dl)

    EXS = [((n, hp), 'EX') for n in (6, 7, 8, 9, 0, 1) for hp in range(2)]
    def ex_off(fi): return 24576 + fi * 1024 if fi < 16 else (fi - 16) * 1024
    st = p.stream('eaddr')
    e = seg0[92]; dl = GAP
    p.sc(seg0[91] + 12, f's_mul_i32 s{sT}, s{sLO}, 40960'); p.sc(seg0[91] + 13, f's_mul_i32 s{sT+1}, s{sHI}, 81920')
    p.sc(seg0[91] + 14, f's_sub_u32 s{sST}, 81920, s{sT+1}'); p.sc(seg0[91] + 15, f's_mov_b64 {sr(sBAD,2)}, 0')
    st.add(f'v_accvgpr_read_b32 v{vER}, a{aL16}', e, dl)
    st.add(f'v_add_u32 v{vER}, s{sT}, v{vER}', e, dl)
    st.add(f'v_add_u32 v{vEW}, s{sT+1}, v{vER}', e, dl)
    st.add(f'v_add_u32 v{vER}, s{sST}, v{vER}', e, dl)
    stw = p.stream('exw')
    for hl in range(2):
        st = p.stream(f'norm{hl}')
        for dh in range(2):
            kc = 2 * hl + dh
            for qt in range(3):
                j = 3 * hl + qt
                e = min(pv[90 + j] + 8 + 5, GAP)
                dl0 = GAP if kc == 0 else os_(4 * kc, 2 * qt) - 2
                if dh == 0:
                    rl = vRL + j
                    st.add(f'v_accvgpr_read_b32 v{rl}, a{LA(j)}', e, dl0)
                    st.add(f'v_cmp_nlt_f32 vcc, v{rl}, s{sLIM}'.replace('v_cmp_nlt_f32', 'v_cmp_nlt_f32_e64'), e, dl0)
                    st.add(f'v_rcp_f32 v{rl}, v{rl}', e, dl0)
                    st.add(f's_or_b64 {sr(sBAD,2)}, {sr(sBAD,2)}, vcc', e, dl0)
                for ks in range(2):
                    b = O(j, 4 * dh + 2 * ks)
                    for r in range(8): st.add(f'v_mul_f32 v{b+r}, v{b+r}, v{vRL+j}', e, dl0)
                    for r in range(4): st.add(f'v_cvt_pk_bf16_f32 v{b+r}, v{b+2*r}, v{b+2*r+1}', e, dl0)
    for g in range(4):
        m = 0
        for qt in range(3):
            for ks in range(2):
                fi = 6 * g + 3 * ks + qt
                w = I(f'ds_write_b128 v{vEW}, {OFr(g,ks,qt)} offset:{ex_off(fi)}', tag=f'ew{g}', lds=EXS + [(f'E{g}', 1)])
                pos = os_(4 * (g + 1) + 1, 5) + 6 * m if m < 4 else os_(4 * (g + 1) + 1, 2) + 6 * (m - 3)
                p.vec(pos, w); m += 1
    st = p.stream('exr')
    for g in range(4):
        m = 0
        for qt in range(3):
            for ks in range(2):
                fi = 6 * g + 3 * ks + qt
                r = I(f'ds_read_b128 {ar(PF(g,ks,qt),4)}, v{vER} offset:{ex_off(fi)}', tag=f'er{g}', lds=[(f'E{g}', 1)])
                st.add(r, os_(4 * (g + 3) - 2, 1) + 3 * m, os_(4 * (g + 4) - 2, 5)); m += 1
    tq = O(5, 1)
    st = p.stream('flag')
    e = os_(4 * 5 - 1, 1); dl = os_(4 * 5 + 1, 4)
    p.sc(e + 2, f's_cmp_lg_u64 {sr(sBAD,2)}, 0'); p.sc(e + 3, f's_cselect_b32 s{sT}, 1, {OPT["fb_force"]}'); p.sc(e + 5, f's_lshl_b32 s{sT+1}, s{sW}, 2')
    p.sc(e + 6, f's_andn2_b32 s{sT}, s{sT}, s{sFB}')
    st.add(f'v_mov_b32 v{tq}, s{sT+1}', e + 7, dl); st.add(f'v_mov_b32 v{tq+1}, s{sT}', e + 7, dl)
    st.add(I(f'ds_write_b32 v{tq}, v{tq+1} offset:24576', tag='fw', lds=[('E0', 2)]), e + 7, dl)
    st.add(f'v_mov_b32 v{tq}, 0', e + 7, dl)
    e = os_(4 * 6 - 2, 1); dl = os_(4 * 6, 4)
    st.add(I(f'ds_read_b128 {vr(tq,4)}, v{tq} offset:24576', tag='fr', lds=[('E0', 2)]), e, dl)
    e = os_(4 * 6 + 2, 0); dl = os_(4 * 7, 0)
    st.add(f'v_or3_b32 v{tq}, v{tq}, v{tq+1}, v{tq+2}', e, dl); st.add(f'v_or_b32 v{tq}, v{tq}, v{tq+3}', e, dl)
    st.add(f'v_cmp_ne_u32 vcc, 0, v{tq}', e, dl)
    p.sc(os_(4 * 7 + 1, 2), 's_cbranch_vccnz L_fallback')

    put_reads(p, pv[95] + 1, o_reads(0)); put_reads(p, pv[95] + 5, o_reads(1), 4)
    for s in range(0, 32):
        b = os_(4 * s - 1)
        if s >= 1 and s + 3 < 32:
            a, bb = o_group(s + 3)
            p.sc(b, 's_barrier'); p.sc(b + 1, a[0]); p.sc(b + 2, a[1])
            for k, d in zip((3, 9, 15, 21), bb): p.vec(b + k, d)
        if s + 1 < 32:
            p.sc(b + 17, WV(f'O{s+1}'))
            if 3 <= s + 1 <= 6: p.sc(b + 17, WL(f'ew{s-2}'))
            if s + 1 == 6: p.sc(b + 17, WL('fw'))
            p.sc(b + 18, 's_barrier')
    for H in range(128):
        if H + 2 < 128: put_reads(p, os_(H), o_reads(H + 2))
        if H + 1 < 128: p.sc(os_(H, 5), WL(f'or{H+1}', *([f'er{(H+1)//4-4}'] if (H + 1) % 4 == 0 and 16 <= H + 1 < 32 else [])))
    vST = vRL
    st = p.stream('staddr')
    st.add(f'v_accvgpr_read_b32 v{vST}, a{aL16}', os_(20), os_(30)); st.add(f'v_add_u32 v{vST}, s{sWSB}, v{vST}', os_(20), os_(30))
    st = p.stream('ost')
    for ps in range(4):
        for s2 in range(2):
            for qt in range(3):
                a, b = ACC(ps, 2 * s2, qt), ACC(ps, 2 * s2 + 1, qt)
                e = min(os_(32 * ps + 28 + 2 * s2 + 1, 2 * qt + 1) + 5, END)
                k = 3 * s2 + qt
                dl = END if ps == 3 else os_(32 * (ps + 1) + 2 + 2 * k, 4)
                for d, x in ((a, a), (a + 1, a + 2), (a + 2, b), (a + 3, b + 2)):
                    st.add(f'v_cvt_pk_bf16_f32 v{d}, v{x}, v{x+1}', e, dl)
                if k in (0, 4): st.add(f's_mov_b32 s{sST}, {ps*6144 + k*1024}', e, dl)
                st.add(I(f'buffer_store_dwordx4 {vr(a,4)}, v{vST}, {sr(SWS,4)}, s{sST} offen offset:{(k & 3)*1024}', tag='st'), e, dl)
    p.place()
    fin = stamp()
    if OPT['stamps']:
        n = nstamp[0]
        fin += [f's_lshl_b32 s{sT}, s2, 8', f's_lshl_b32 s{sT+1}, s{sW}, 6', f's_add_u32 s{sT}, s{sT}, s{sT+1}', f's_add_u32 s{sT}, s{sT}, 0x4000000']
        fin += [l for l in srd(SOUT, 60, None, 268435456).split('\n') if l]
        fin += ['v_mov_b32 v0, 0']
        for k in range(n):
            fin += [f's_sub_u32 s{sT+1}, s{sSTAMP+2*k}, s{sSTAMP}' if k else f's_mov_b32 s{sT+1}, s{sSTAMP}', f'v_mov_b32 v1, s{sT+1}', f'buffer_store_dword v1, v0, {sr(SOUT,4)}, s{sT} offen offset:{4*k}']
    p.raw(fin + ['L_exit:', 's_endpgm'])
    fb = ['L_fallback:', 's_waitcnt vmcnt(0) lgkmcnt(0)', 's_barrier', f's_mov_b32 s{sFB}, 1', 's_nop 7',
          f'v_accvgpr_read_b32 v0, a{aL16}', 'v_lshrrev_b32 v0, 4, v0'] + [l for l in setup_attn(0, 1).split('\n') if l.strip()]
    fb += [f'v_mov_b32 v{8+j}, 0xff800000' for j in range(6)]
    fb += [f's_mov_b32 s{sKVO}, 0', 'L_fbloop:', f's_mov_b32 m0, s{sDMA}', 's_nop 0']
    fb += [dma(vKV + j, SK, f's{sKVO}', 1024 * j, None, None) for j in range(4)]
    fb += ['s_waitcnt vmcnt(0)', 's_barrier']
    fb += [I(r.t) for r in k_reads(0)] + ['s_waitcnt lgkmcnt(0)', 's_barrier']
    for j in range(6):
        for kt in range(2):
            for ks in range(4):
                d = vr(16 + 8 * j + 4 * kt, 4)
                fb.append(f'{MF} {d}, {ar(KF(kt,ks),4)}, {ar(Q(j,ks),4)}, {d if ks else 0}')
    for j in range(6):
        for r in range(0, 8, 2): fb.append(f'v_max3_f32 v{8+j}, v{8+j}, v{16+8*j+r}, v{16+8*j+r+1}')
    fb += [f's_add_u32 s{sKVO}, s{sKVO}, 8192', f's_cmp_lt_u32 s{sKVO}, 131072', 's_cbranch_scc1 L_fbloop']
    for j in range(6):
        for sw in ('v_permlane32_swap_b32', 'v_permlane16_swap_b32'):
            fb += [f'v_mov_b32 v1, v{8+j}', f'{sw} v1, v{8+j}', f'v_max_f32 v{8+j}, v1, v{8+j}']
        fb += [f'v_sub_f32 v{NM(j)+r}, 0, v{8+j}' for r in range(4)]
    for i in range(5):
        for nm in (f'K{i}', f'V{i}'):
            a, bb = kv_group(nm); fb += a + [I(x.t) for x in bb]
    fb += ['s_waitcnt vmcnt(0)', 's_barrier'] + [I(r.t) for r in k_reads(0) + v_reads(0)] + ['s_waitcnt lgkmcnt(0)', 's_nop 7', 's_branch L_attn']
    p.mark('fallback')
    p.raw(fb)
    lin = p.linearize()
    log = []
    lin = fix_hazards(lin, log)
    errs = check_lds(lin)
    return p, lin, log, errs, setup_items

SCALE = int.from_bytes(__import__('struct').pack('<f', math.log2(math.e) / math.sqrt(128.0)), 'little')

def gen_reduce():
    p = Prog()
    b = f"""
    s_cmp_ge_u32 s2, 768
    s_cbranch_scc1 R_exit
    s_load_dwordx2 s[20:21], s[0:1], 80
    s_load_dwordx2 s[22:23], s[0:1], 96
    v_lshrrev_b32 v1, 6, v0
    v_and_b32 v2, 63, v0
    v_readfirstlane_b32 s3, v1
    s_mul_i32 s12, s2, 2731
    s_lshr_b32 s12, s12, 16
    s_mul_i32 s13, s12, 24
    s_sub_u32 s13, s2, s13
    s_lshl_b32 s13, s13, 2
    s_add_u32 s13, s13, s3
    s_mul_i32 s14, s12, 768
    s_add_u32 s14, s14, s13
    s_lshl_b32 s14, s14, 10
    v_lshlrev_b32 v3, 4, v2
    v_add_u32 v3, s14, v3
    s_waitcnt lgkmcnt(0)
    """ + srd(4, 22, None, 25165824) + srd(8, 20, None, 3145728)
    items = [l for l in b.split('\n') if l.strip()]
    for h in range(8):
        items += [f's_mov_b32 s15, {h*98304}', f'buffer_load_dwordx4 {vr(8+4*h,4)}, v3, s[4:7], s15 offen']
    b = f"""
    s_mul_i32 s16, s13, 2731
    s_lshr_b32 s16, s16, 16
    s_mul_i32 s17, s16, 24
    s_sub_u32 s17, s13, s17
    s_mul_i32 s18, s17, 10923
    s_lshr_b32 s18, s18, 16
    s_mul_i32 s19, s18, 6
    s_sub_u32 s19, s17, s19
    s_mul_i32 s24, s19, 21846
    s_lshr_b32 s24, s24, 16
    s_mul_i32 s25, s24, 3
    s_sub_u32 s25, s19, s25
    s_and_b32 s26, s12, 15
    s_lshr_b32 s27, s12, 4
    s_lshl_b32 s28, s26, 1
    s_and_b32 s29, s16, 1
    s_add_u32 s28, s28, s29
    s_mul_i32 s28, s28, 3
    s_add_u32 s28, s28, s25
    s_lshl_b32 s28, s28, 15
    s_lshl_b32 s27, s27, 10
    s_add_u32 s28, s28, s27
    s_lshr_b32 s29, s16, 1
    s_lshl_b32 s29, s29, 9
    s_add_u32 s28, s28, s29
    s_and_b32 s26, s26, 3
    s_xor_b32 s18, s18, s26
    s_lshl_b32 s18, s18, 7
    s_add_u32 s28, s28, s18
    s_lshl_b32 s24, s24, 6
    s_add_u32 s28, s28, s24
    v_bfe_u32 v4, v2, 4, 1
    v_lshrrev_b32 v5, 5, v2
    v_lshl_or_b32 v4, v4, 1, v5
    v_lshlrev_b32 v4, 4, v4
    v_and_b32 v5, 15, v2
    v_lshl_or_b32 v4, v5, 11, v4
    v_add_u32 v4, s28, v4
    s_mov_b32 s30, 0xffff0000
    """
    items += [l for l in b.split('\n') if l.strip()]
    setup = list(items)
    for h in range(8):
        for r in range(4):
            x = 8 + 4 * h + r
            if h == 0:
                items += [f'v_lshlrev_b32 v{40+2*r}, 16, v{x}', f'v_and_b32 v{41+2*r}, s30, v{x}']
            else:
                items += [f'v_lshlrev_b32 v6, 16, v{x}', f'v_and_b32 v7, s30, v{x}', f'v_add_f32 v{40+2*r}, v{40+2*r}, v6', f'v_add_f32 v{41+2*r}, v{41+2*r}, v7']
    items += [f'v_cvt_pk_bf16_f32 v{8+r}, v{40+2*r}, v{41+2*r}' for r in range(4)]
    items += ['v_permlane16_swap_b32 v8, v10', 'v_permlane16_swap_b32 v9, v11', 'buffer_store_dwordx4 v[8:11], v4, s[8:11], 0 offen', 'R_exit:', 's_endpgm']
    p.raw(items)
    lin = fix_hazards(p.linearize())
    return lin, setup

def text(lin):
    return ''.join((x.t if x.k == 'L' else '    ' + x.t) + '\n' for x in lin)

def build(path):
    p, lin, log, errs, setup = gen_main()
    rl, rsetup = gen_reduce()
    s = HEADER_COMMENT
    s += f'; @launch kernel={KNAME} grid=(256,1,1) block=(256,1,1) lds=163840\n'
    s += f'; @launch kernel={RNAME} grid=(768,1,1) block=(256,1,1) lds=0\n'
    s += '.amdgcn_target "amdgcn-amd-amdhsa--gfx950"\n.text\n'
    s += kernel_open(KNAME) + text(lin) + kernel_open(RNAME) + text(rl)
    s += '.section .rodata,"a"\n.p2align 6\n' + kernel_desc(KNAME, 512, 256) + '.p2align 6\n' + kernel_desc(RNAME, 64, 64)
    open(path, 'w').write(s)
    return p, lin, log, errs, setup, rsetup

if __name__ == '__main__':
    path = sys.argv[1] if len(sys.argv) > 1 else 'k.s'
    for a in sys.argv[2:]:
        k, v = a.split('='); OPT[k] = type(OPT[k])(v)
    p, lin, log, errs, setup, rsetup = build(path)
    res, cyc = estimate(p, lin)
    tot = 0
    for r in res:
        print('%-10s mfma %4d cyc %6d over %5d' % r)
        if r[0] != 'fallback': tot += r[2]
    print('total', tot, 'instrs', len(lin), 'nops', len(log), 'lds errs', len(errs))
    for l in log[:40]: print(l)
    for e in errs[:20]: print('ERR', e)
```

```python
import numpy as np
from gen import *
p, lin, log, errs, setup, rsetup = build('k.s')
bad = 0
def cmp(name, got, exp):
    global bad
    if not np.array_equal(np.asarray(got), np.asarray(exp)):
        bad += 1; print('MISMATCH', name, got, exp)
f4 = lambda k: ((k & 7) << 1) | (k >> 3)
for wg in (0, 1, 37, 90, 255, 170):
    for w in range(4):
        it = Interp(64 * w, wg); it.run(setup)
        i = np.arange(64); lo, hi = w & 1, w >> 1
        br = wg & 1; h = ((wg >> 1) & 3) * 2 + ((wg >> 3) & 1); bp = wg >> 4; rot = bp & 3
        g = i >> 4; q = i & 15; r = (i >> 2) & 3; c = i & 3; dr = i >> 3; ds = i & 7
        sig = ((g & 1) << 1) | (g >> 1)
        for jj in range(4):
            f = ((dr >> 1) & 1) | ((jj & 1) << 1)
            cmp('WD', it.v[vWD + jj], (32 * hi + 8 * jj + dr) * 8192 + (ds ^ (f << 1)) * 16 + h * 1024 + lo * 512 - 1024 * jj)
            cmp('KV', it.v[vKV + jj], g * 256 + (q ^ f4(4 * jj + g)) * 16 + ((2 * bp + lo) * 8 + h) * 131072 + hi * 4096)
            f = ((g & 1) << 1) | (r >> 1)
            for T in range(2): cmp('WA', it.v[vWA + 4 * T + jj], g * 1024 + r * 128 + (jj ^ f) * 32 + c * 8 + hi * 40960 + T * 81920)
            ks = jj ^ ((rot & 1) << 1)
            cmp('KA', it.v[vKA + jj], q * 256 + ((4 * ks + sig) ^ f4(q)) * 16 + lo * 40960)
            cmp('KM', it.v[vKM + jj], c * 256 + ((4 * ks + sig) ^ f4(c)) * 16 + lo * 40960)
        for jj in range(3):
            j = 3 * hi + jj; f = ((j & 1) << 2) | (dr >> 1)
            cmp('XD', it.v[vXD + jj], (2 * bp + lo) * 49152 + (8 * j + dr) * 1024 + (ds ^ f) * 16 - 1024 * jj)
        for T in range(2):
            for ks in range(2): cmp('XA', it.v[vXA + 2 * T + ks], q * 128 + ((4 * ks + g) ^ ((q >> 1) & 7)) * 16 + lo * 40960 + T * 81920)
        for dt in range(8):
            cmp('VA', it.v[vVA + dt], (4 * g + r) * 256 + ((2 * dt + (c >> 1)) ^ f4(4 * g + r)) * 16 + (c & 1) * 8 + lo * 40960 + 81920)
        cmp('OD', it.a[aOD], (h * 512 + 32 * hi + dr) * 1024 + (ds ^ (((dr >> 1) & 3) << 1)) * 16 + lo * 512)
        f = ((g & 1) << 1) | (r >> 1)
        cmp('OA', it.a[aOA], g * 512 + r * 128 + f * 32 + c * 8 + hi * 81920)
        cmp('sDMA', it.s[sDMA], lo * 40960 + hi * 4096); cmp('sDMAX', it.s[sDMAX], lo * 40960 + hi * 3072); cmp('sDMAO', it.s[sDMAO], lo * 81920 + hi * 4096)
        cmp('sRO', it.s[sRO], (((lo << 2) | (rot & 2)) << 16) | (rot << 7))
        cmp('sWSB', it.s[sWSB], (((br * 16 + bp) * 8 + h) * 96 + w * 24) * 1024)
for wg in range(768):
    for w in range(4):
        it = Interp(64 * w, wg); it.run(rsetup)
        U = wg * 4 + w; grp = U // 96; rem = U % 96; ww = rem // 24; ps = (rem % 24) // 6; s2 = (rem % 6) // 3; qt = rem % 3
        i = np.arange(64); g = i >> 4; sig = ((g & 1) << 1) | (g >> 1)
        br, bp = grp >> 4, grp & 15
        cmp('r3', it.v[3], (grp * 768 + rem) * 1024 + i * 16)
        cmp('r4', it.v[4], ((2 * bp + (ww & 1)) * 48 + 16 * qt + (i & 15)) * 2048 + (br * 512 + 256 * (ww >> 1) + 64 * (ps ^ (bp & 3)) + 32 * s2 + 8 * sig) * 2)
print('bad', bad)
```

```python
import sys, math
from gcore import *
from asmlib import HEADER_COMMENT, kernel_open, kernel_desc, KNAME, vr, ar, sr

MF = 'v_mfma_f32_16x16x32_bf16'
RNAME = 'reduce_partials_kernel'
OPT = dict(stamps=0, dbg='', fb_force=0, ntkv=1, ntw=0, ntx=0, ntst='', ntred='')

SX, SK, SV, SWQ, SWO, SWS, SOUT = 4, 8, 12, 16, 20, 24, 28
sW, sLO, sHI, sH, sBP, sBR, sROT = 3, 62, 63, 64, 65, 66, 67
sDMA, sDMAX, sDMAO, sRQ, sRO, sSOFF, sKVO, sSC, sWSB, sST, sFB, sBAD, sT = 68, 69, 70, 71, 72, 73, 74, 75, 76, 77, 78, 80, 82
sLIM = 79
sSTAMP = 84
def C(cb, t, qt): return 48 * cb + 12 * t + 4 * qt
def O(j, dt): return 32 * j + 4 * dt
def S(b, kt=0): return 192 + 8 * b + 4 * kt
def P(b): return 208 + 4 * b
def NM(j): return 216 + 4 * j
vKA, vVA, vKV = 240, 244, 252
vWA, vXA, vWD, vXD, vKM = 192, 200, 204, 208, 212
vL = 216; T0 = 217
vOA, vRL, vEW, vER, vOD = 240, 244, 250, 251, 252
def X(kc, ks, qt): return 24 * kc + 12 * ks + 4 * qt
def WF(b, ks, hf=0): return 192 + 8 * b + 4 * ks + 2 * hf
def Q(j, ks): return 24 * (2 * (j // 3) + (ks >> 1)) + 12 * (ks & 1) + 4 * (j % 3)
def KF(kt, ks): return 96 + 16 * kt + 4 * ks
def KMF(ks): return 128 + 4 * ks
def VF(dt, hf=0): return 144 + 4 * dt + 2 * hf
def LA(j): return 216 + 4 * j
aONE = 240
aOD, aOA, aL16 = 244, 245, 246
def PF(g, ks, qt): return 96 + 24 * g + 12 * ks + 4 * qt

def slot_off(n): return (n & 1) * 81920 + (n >> 1) * 8192
def slot_reg(n, gen): return [((n, 0), gen), ((n, 1), gen)]

def dma(voff, srd, soff, off, tag, lds):
    nt = ' nt' if {SK: OPT['ntkv'], SV: OPT['ntkv'], SWQ: OPT['ntw'], SWO: OPT['ntw'], SX: OPT['ntx']}[srd] else ''
    return I(f'buffer_load_dwordx4 v{voff}, {sr(srd,4)}, {soff} offen offset:{off}{nt} lds', tag=tag, lds=lds)

def setup_attn(L, t):
    return f"""
    v_lshrrev_b32 v{t}, 4, v{L}
    v_and_b32 v{t+1}, 15, v{L}
    v_lshlrev_b32 v{t+2}, 1, v{t}
    v_xor_b32 v{t+2}, v{t+1}, v{t+2}
    v_lshlrev_b32 v{t+2}, 4, v{t+2}
    v_lshl_or_b32 v{t+2}, v{t}, 8, v{t+2}
    s_lshl_b32 s{sT}, s{sBP}, 1
    s_add_u32 s{sT}, s{sT}, s{sLO}
    s_lshl_b32 s{sT}, s{sT}, 3
    s_add_u32 s{sT}, s{sT}, s{sH}
    s_lshl_b32 s{sT}, s{sT}, 5
    s_add_u32 s{sT}, s{sT}, s{sHI}
    s_lshl_b32 s{sT}, s{sT}, 12
    v_add_u32 v{vKV}, s{sT}, v{t+2}
    v_xor_b32 v{vKV+1}, 0x80, v{vKV}
    v_xor_b32 v{vKV+2}, 16, v{vKV}
    v_xor_b32 v{vKV+3}, 0x90, v{vKV}
    s_mul_i32 s{sT}, s{sLO}, 40960
    s_and_b32 s{sT+1}, s{sROT}, 1
    s_lshl_b32 s{sT+1}, s{sT+1}, 7
    s_add_u32 s{sT+1}, s{sT+1}, s{sT}
    v_bfe_u32 v{t+2}, v{L}, 4, 1
    v_lshrrev_b32 v{t+3}, 5, v{L}
    v_lshl_or_b32 v{t}, v{t+2}, 1, v{t+3}
    v_and_b32 v{t+2}, 7, v{L}
    v_bfe_u32 v{t+3}, v{L}, 3, 1
    v_lshl_or_b32 v{t+2}, v{t+2}, 1, v{t+3}
    v_xor_b32 v{t+2}, v{t+2}, v{t}
    v_lshlrev_b32 v{t+2}, 4, v{t+2}
    v_lshl_or_b32 v{t+2}, v{t+1}, 8, v{t+2}
    v_xor_b32 v{vKA}, s{sT+1}, v{t+2}
    v_xor_b32 v{vKA+1}, 64, v{vKA}
    v_xor_b32 v{vKA+2}, 0x80, v{vKA}
    v_xor_b32 v{vKA+3}, 0xc0, v{vKA}
    v_and_b32 v{t+1}, 3, v{L}
    v_lshlrev_b32 v{t+2}, 1, v{t+1}
    v_xor_b32 v{t+2}, v{t+2}, v{t}
    v_lshlrev_b32 v{t+2}, 4, v{t+2}
    v_lshl_or_b32 v{t+2}, v{t+1}, 8, v{t+2}
    v_xor_b32 v{vKM}, s{sT+1}, v{t+2}
    v_xor_b32 v{vKM+1}, 64, v{vKM}
    v_xor_b32 v{vKM+2}, 0x80, v{vKM}
    v_xor_b32 v{vKM+3}, 0xc0, v{vKM}
    s_add_u32 s{sT}, s{sT}, 81920
    v_bfe_u32 v{t}, v{L}, 2, 3
    v_lshrrev_b32 v{t+1}, 5, v{L}
    v_lshl_or_b32 v{t}, v{t}, 1, v{t+1}
    v_bfe_u32 v{t+1}, v{L}, 1, 1
    v_xor_b32 v{t}, v{t}, v{t+1}
    v_and_b32 v{t+1}, 1, v{L}
    v_lshl_or_b32 v{t}, v{t}, 1, v{t+1}
    v_lshlrev_b32 v{t}, 3, v{t}
    v_lshrrev_b32 v{t+1}, 2, v{L}
    v_lshl_or_b32 v{t}, v{t+1}, 8, v{t}
    v_add_u32 v{vVA}, s{sT}, v{t}
    """ + ''.join(f'v_xor_b32 v{vVA+d}, {hex(d<<5)}, v{vVA}\n' for d in range(1, 8))

def srd(dst, a, b, size):
    s = f's_cselect_b32 s{dst}, s{b}, s{a}\ns_cselect_b32 s{dst+1}, s{b+1}, s{a+1}\n' if b is not None else f's_mov_b32 s{dst}, s{a}\ns_mov_b32 s{dst+1}, s{a+1}\n'
    return s + f's_mov_b32 s{dst+2}, {size}\ns_mov_b32 s{dst+3}, 0x20000\n'

def stage_of(s):
    return (s & 1, s >> 1) if s < 16 else (2 + (s - 16) // 8, s % 8)
def wslot(s): return 5 + (s + 3) % 5
def xslot(kc): return 2 + kc % 3
def kvslot(name): return 2 * (int(name[1:]) % 5) + (name[0] == 'V')

def w_group(s):
    cb, kc = stage_of(s); n = wslot(s)
    return ([f's_add_u32 m0, s{sDMA}, {slot_off(n)}', f's_xor_b32 s{sSOFF}, s{sRQ}, {kc*524288 + cb*128}'],
            [dma(vWD + j, SWQ, f's{sSOFF}', 1024 * j, f'W{s}', slot_reg(n, f'W{s}')) for j in range(4)])
def x_piece(kc, j):
    n = xslot(kc)
    return ([f's_add_u32 m0, s{sDMAX}, {slot_off(n) - 128*kc}'], dma(vXD + j, SX, '0', 1024 * j + 128 * kc, f'x{kc}', slot_reg(n, f'x{kc}')))
def kv_group(name):
    n = kvslot(name); tile = int(name[1:])
    return ([f's_add_u32 m0, s{sDMA}, {slot_off(n)}', f's_mov_b32 s{sKVO}, {tile*8192}'],
            [dma(vKV + j, SK if name[0] == 'K' else SV, f's{sKVO}', 1024 * j, name, slot_reg(n, name)) for j in range(4)])
OPL = [(1, 0), (1, 1), (2, 0), (2, 1)]
def o_place(s): return OPL[s % 4]
def o_off(s): idx, hp = o_place(s); return hp * 40960 + idx * 8192
def o_reg(s): idx, hp = o_place(s); return [((2 * idx, hp), f'O{s}'), ((2 * idx + 1, hp), f'O{s}')]
def o_group(s):
    ps, kc = s >> 3, s & 7
    return ([f's_add_u32 m0, s{sDMAO}, {o_off(s)}', f's_xor_b32 s{sSOFF}, s{sRO}, {kc*65536 + ps*128}'],
            [dma(vOD + j, SWO, f's{sSOFF}', 1024 * j, f'O{s}', o_reg(s)) for j in range(4)])

def w_reads(H):
    s, t = H >> 2, H & 3; n = wslot(s)
    return [I(f'ds_read_b64_tr_b16 {ar(WF(H%3,ks,hf),2)}, v{vWA + 4*(n&1) + t} offset:{(n>>1)*8192 + ks*4096 + hf*512}', tag=f'wr{H}', lds=slot_reg(n, f'W{s}'))
            for ks in range(2) for hf in range(2)]
def o_reads(H):
    s, t = H >> 2, H & 3
    return [I(f'ds_read_b64_tr_b16 {ar(WF(H%3,ks,hf),2)}, v{vOA + t} offset:{o_off(s) + ks*4096 + hf*2048}', tag=f'or{H}', lds=o_reg(s))
            for ks in range(2) for hf in range(2)]
def x_reads(kc):
    n = xslot(kc)
    return [I(f'ds_read_b128 {ar(X(kc,ks,qt),4)}, v{vXA + 2*(n&1) + ks} offset:{(n>>1)*8192 + qt*2048}', tag=f'xr{kc}', lds=slot_reg(n, f'x{kc}'))
            for qt in range(3) for ks in range(2)]
def k_reads(i):
    n = kvslot(f'K{i}')
    return [I(f'ds_read_b128 {ar(KF(kt,ks),4)}, v{vKA + ks} offset:{(n>>1)*8192 + kt*4096}', tag=f'kr{i}', lds=slot_reg(n, f'K{i}'))
            for kt in range(2) for ks in range(4)]
def v_reads(i):
    n = kvslot(f'V{i}')
    return [I(f'ds_read_b64_tr_b16 {ar(VF(dt,hf),2)}, v{vVA + dt} offset:{(n>>1)*8192 + hf*4096}', tag=f'vr{i}', lds=slot_reg(n, f'V{i}'))
            for dt in range(8) for hf in range(2)]

nstamp = [0]
def stamp():
    if not OPT['stamps']: return []
    k = nstamp[0]; nstamp[0] += 1
    return [f's_memtime {sr(sSTAMP, 2)}', 's_waitcnt lgkmcnt(0)', f's_mov_b32 s{sSTAMP+2+k}, s{sSTAMP}']

def put_reads(p, base, reads, limit=5):
    free = [k for k in range(limit) if p.slots[base + k].used() == 0]
    if len(free) >= 4: pos = free[:4]
    elif len(free) == 3: pos = [free[0], free[0], free[1], free[2]]
    else: pos = [free[0], free[0], free[1], free[1]]
    for k, r in zip(pos, reads): p.vec(base + k, r)

def gen_main():
    nstamp[0] = 0
    p = Prog()
    L, t = vL, T0
    p.mark('prolog')
    pro = f"""
    s_cmp_ge_u32 s2, 256
    s_cbranch_scc1 L_exit
    s_load_dwordx16 s[36:51], s[0:1], 0
    s_load_dwordx8 s[52:59], s[0:1], 64
    s_load_dwordx2 s[60:61], s[0:1], 96
    v_lshrrev_b32 v1, 6, v0
    v_and_b32 v{L}, 63, v0
    v_readfirstlane_b32 s{sW}, v1
    s_and_b32 s{sBR}, s2, 1
    s_bfe_u32 s{sH}, s2, 0x20001
    s_bfe_u32 s{sT}, s2, 0x10003
    s_lshl_b32 s{sH}, s{sH}, 1
    s_add_u32 s{sH}, s{sH}, s{sT}
    s_lshr_b32 s{sBP}, s2, 4
    s_and_b32 s{sROT}, s{sBP}, 3
    s_and_b32 s{sLO}, s{sW}, 1
    s_lshr_b32 s{sHI}, s{sW}, 1
    s_lshl_b32 s{sRQ}, s{sROT}, 7
    s_mul_i32 s{sT}, s{sLO}, 40960
    s_lshl_b32 s{sDMA}, s{sHI}, 12
    s_add_u32 s{sDMA}, s{sDMA}, s{sT}
    s_mul_i32 s{sDMAX}, s{sHI}, 3072
    s_add_u32 s{sDMAX}, s{sDMAX}, s{sT}
    v_lshrrev_b32 v{t}, 3, v{L}
    v_and_b32 v{t+1}, 7, v{L}
    v_lshrrev_b32 v{t+2}, 4, v{L}
    v_xor_b32 v{t+2}, v{t+1}, v{t+2}
    v_lshlrev_b32 v{t+2}, 4, v{t+2}
    v_lshl_or_b32 v{t+2}, v{t}, 10, v{t+2}
    s_lshl_b32 s{sT}, s{sBP}, 2
    s_lshl_b32 s{sT+1}, s{sLO}, 1
    s_add_u32 s{sT}, s{sT}, s{sT+1}
    s_add_u32 s{sT}, s{sT}, s{sHI}
    s_mul_i32 s{sT}, s{sT}, 24576
    s_lshl_b32 s{sT+1}, s{sHI}, 6
    v_xor_b32 v{t+2}, s{sT+1}, v{t+2}
    v_add_u32 v{vXD}, s{sT}, v{t+2}
    v_xor_b32 v{vXD+1}, 64, v{vXD}
    v_add_u32 v{vXD+1}, 7168, v{vXD+1}
    v_add_u32 v{vXD+2}, 14336, v{vXD}
    v_bfe_u32 v{t+2}, v{L}, 4, 1
    v_lshlrev_b32 v{t+2}, 1, v{t+2}
    v_xor_b32 v{t+2}, v{t+1}, v{t+2}
    v_lshlrev_b32 v{t+2}, 4, v{t+2}
    v_lshl_or_b32 v{t+2}, v{t}, 13, v{t+2}
    s_lshl_b32 s{sT}, s{sHI}, 8
    s_add_u32 s{sT}, s{sT}, s{sH}
    s_lshl_b32 s{sT}, s{sT}, 1
    s_add_u32 s{sT}, s{sT}, s{sLO}
    s_lshl_b32 s{sT}, s{sT}, 9
    v_add_u32 v{vWD}, s{sT}, v{t+2}
    v_xor_b32 v{vWD+1}, 64, v{vWD}
    v_add_u32 v{vWD+2}, 129024, v{vWD}
    v_add_u32 v{vWD+3}, 193536, v{vWD+1}
    v_add_u32 v{vWD+1}, 64512, v{vWD+1}
    s_cmp_eq_u32 s{sBR}, 1
    s_waitcnt lgkmcnt(0)
    """ + srd(SX, 36, 46, 1572864) + srd(SWQ, 42, 52, 4194304) + srd(SK, 38, 48, 33554432) + srd(SV, 40, 50, 33554432) + srd(SWO, 44, 54, 4194304)
    items = [l for l in pro.split('\n') if l.strip()] + stamp()
    def xall(kc):
        o = list(x_piece(kc, 0)[0]) + ['s_nop 0']
        return o + [x_piece(kc, j)[1] for j in range(3)]
    def wall(s): a, b = w_group(s); return a + b
    items += xall(0) + wall(0) + wall(1) + xall(1) + wall(2) + wall(3) + xall(2) + wall(4)
    rest = srd(SWS, 60, None, 25165824) + f"""
    s_mov_b32 s{sSC}, {hex(SCALE)}
    s_mov_b32 s{sFB}, 0
    s_mov_b32 s{sLIM}, 0x4e800000
    s_mul_i32 s{sT}, s{sHI}, 40960
    v_bfe_u32 v{t}, v{L}, 3, 2
    v_and_b32 v{t+1}, 3, v{L}
    v_lshl_or_b32 v{t}, v{t}, 2, v{t+1}
    v_lshlrev_b32 v{t}, 3, v{t}
    v_bfe_u32 v{t+1}, v{L}, 2, 2
    v_lshl_or_b32 v{t}, v{t+1}, 7, v{t}
    v_lshrrev_b32 v{t+1}, 4, v{L}
    v_lshl_or_b32 v{t+2}, v{t+1}, 10, v{t}
    v_add_u32 v{vWA}, s{sT}, v{t+2}
    v_xor_b32 v{vWA+1}, 32, v{vWA}
    v_xor_b32 v{vWA+2}, 64, v{vWA}
    v_xor_b32 v{vWA+3}, 0x60, v{vWA}
    v_add_u32 v{vWA+4}, 81920, v{vWA}
    v_add_u32 v{vWA+5}, 81920, v{vWA+1}
    v_add_u32 v{vWA+6}, 81920, v{vWA+2}
    v_add_u32 v{vWA+7}, 81920, v{vWA+3}
    s_lshl_b32 s{sT}, s{sT}, 1
    v_lshl_or_b32 v{t+2}, v{t+1}, 9, v{t}
    v_add_u32 v{t+2}, s{sT}, v{t+2}
    v_accvgpr_write_b32 a{aOA}, v{t+2}
    s_mul_i32 s{sT}, s{sLO}, 40960
    v_bfe_u32 v{t}, v{L}, 1, 3
    v_xor_b32 v{t}, v{t}, v{t+1}
    v_lshlrev_b32 v{t}, 4, v{t}
    v_and_b32 v{t+2}, 15, v{L}
    v_lshl_or_b32 v{t}, v{t+2}, 7, v{t}
    v_add_u32 v{vXA}, s{sT}, v{t}
    v_xor_b32 v{vXA+1}, 64, v{vXA}
    v_add_u32 v{vXA+2}, 81920, v{vXA}
    v_add_u32 v{vXA+3}, 81920, v{vXA+1}
    v_lshlrev_b32 v{t+1}, 1, v{t+1}
    v_and_b32 v{t}, 7, v{L}
    v_xor_b32 v{t}, v{t}, v{t+1}
    v_lshlrev_b32 v{t}, 4, v{t}
    v_lshrrev_b32 v{t+1}, 3, v{L}
    v_lshl_or_b32 v{t}, v{t+1}, 10, v{t}
    s_lshl_b32 s{sT}, s{sH}, 4
    s_add_u32 s{sT}, s{sT}, s{sHI}
    s_lshl_b32 s{sT}, s{sT}, 6
    s_add_u32 s{sT}, s{sT}, s{sLO}
    s_lshl_b32 s{sT}, s{sT}, 9
    v_add_u32 v{t}, s{sT}, v{t}
    v_accvgpr_write_b32 a{aOD}, v{t}
    v_lshlrev_b32 v{t}, 4, v{L}
    v_accvgpr_write_b32 a{aL16}, v{t}
    v_mov_b32 v{t}, 0x3f803f80
    v_accvgpr_write_b32 a{aONE}, v{t}
    v_accvgpr_write_b32 a{aONE+1}, v{t}
    v_accvgpr_write_b32 a{aONE+2}, v{t}
    v_accvgpr_write_b32 a{aONE+3}, v{t}
    s_mul_i32 s{sDMAO}, s{sLO}, 81920
    s_lshl_b32 s{sT}, s{sHI}, 12
    s_add_u32 s{sDMAO}, s{sDMAO}, s{sT}
    s_lshl_b32 s{sRO}, s{sLO}, 2
    s_and_b32 s{sT}, s{sROT}, 2
    s_or_b32 s{sRO}, s{sRO}, s{sT}
    s_lshl_b32 s{sRO}, s{sRO}, 16
    s_or_b32 s{sRO}, s{sRO}, s{sRQ}
    s_lshl_b32 s{sT}, s{sBR}, 4
    s_add_u32 s{sT}, s{sT}, s{sBP}
    s_lshl_b32 s{sT}, s{sT}, 3
    s_add_u32 s{sT}, s{sT}, s{sH}
    s_lshl_b32 s{sT}, s{sT}, 2
    s_add_u32 s{sT}, s{sT}, s{sW}
    s_mul_i32 s{sWSB}, s{sT}, 24576
    """ + setup_attn(L, t)
    items += [l for l in rest.split('\n') if l.strip()]
    setup_items = list(items)
    xr = x_reads(0)
    items += [WV('x0', 'W0'), 's_barrier'] + stamp() + xr[:2] + w_reads(0) + xr[2:] + w_reads(1)
    p.raw(items)

    p.mark('qproj')
    Q0 = p.n()
    for s in range(32):
        cb, kc = stage_of(s)
        for tt in range(4):
            H = 4 * s + tt
            for qt in range(3):
                for ks in range(2):
                    d = vr(C(cb, tt, qt), 4)
                    p.mfma(f'{MF} {d}, {ar(WF(H%3,ks),4)}, {ar(X(kc,ks,qt),4)}, {d if (kc or ks) else 0}')
    qs = lambda H, k=0: Q0 + 6 * H + k
    p.mark('attn0')
    A0 = p.n()
    mslot = {}; qk = {}; pv = {}; seg0 = {}
    def emit_max(j):
        mslot[j] = p.n()
        for ks in range(4):
            d = vr(NM(j), 4)
            p.mfma(f'{MF} {d}, {ar(KMF(ks),4)}, {ar(Q(j,ks),4)}, {d if ks else 0}')
    def emit_qk(G):
        j = G % 6; qk[G] = p.n()
        for kt in range(2):
            for ks in range(4):
                d = vr(S(G & 1, kt), 4)
                p.mfma(f'{MF} {d}, {ar(KF(kt,ks),4)}, {ar(Q(j,ks),4)}, {d if ks else vr(NM(j),4)}')
    def emit_pv(G):
        j = G % 6; pv[G] = p.n()
        for dt in range(8):
            d = vr(O(j, dt), 4)
            p.mfma(f'{MF} {d}, {ar(VF(dt),4)}, {vr(P(G&1),4)}, {d if G >= 6 else 0}')
        d = ar(LA(j), 4)
        p.mfma(f'{MF} {d}, {ar(aONE,4)}, {vr(P(G&1),4)}, {d if G >= 6 else 0}')
    for j in range(6): emit_max(j)
    FBJ = p.raw(['L_attn:'])
    emit_qk(0)
    for G in range(96):
        if G % 6 == 0 and G: p.mark(f'tile{G//6}')
        seg0[G] = p.n()
        if G + 1 < 96: emit_qk(G + 1)
        if G >= 1: emit_pv(G - 1)
    seg0[96] = p.n()
    emit_pv(95)
    p.mark('oproj')
    GAP = p.raw([])
    O0 = p.n()
    def OFr(kc, ks, qt):
        if kc < 4: return vr(O(3 * (kc >> 1) + qt, 4 * (kc & 1) + 2 * ks), 4)
        return ar(PF(kc - 4, ks, qt), 4)
    def ACC(ps, tt, qt):
        if ps & 1 == 0: return 192 + 12 * tt + 4 * qt
        return O(qt, 2 * tt + 1)
    for s in range(32):
        ps, kc = s >> 3, s & 7
        for tt in range(4):
            H = 4 * s + tt
            for qt in range(3):
                for ks in range(2):
                    d = vr(ACC(ps, tt, qt), 4)
                    p.mfma(f'{MF} {d}, {ar(WF(H%3,ks),4)}, {OFr(kc,ks,qt)}, {d if (kc or ks) else 0}')
    os_ = lambda H, k=0: O0 + 6 * H + k
    p.mark('tail')
    END = p.raw([])

    early = [(nm, j) for nm in ('K0', 'V0', 'K1', 'V1', 'K2') for j in range(4)]
    late = {28: 'V2', 29: 'K3', 30: 'V3', 31: 'K4', 32: 'V4'}
    for s in range(33):
        b = qs(4 * s - 1)
        extras = []
        if s < 10:
            kc = s // 2 + 3
            extras = [x_piece(kc, 0)] if s % 2 == 0 else [x_piece(kc, 1), x_piece(kc, 2)]
        elif s < 28:
            nm, j = early.pop(0); a, bb = kv_group(nm); extras = [(a, bb[j])]
        if s == 0:
            a, bb = kv_group('K0'); early = early[2:]
            p.sc(b + 7, a[0]); p.sc(b + 8, a[1]); p.vec(b + 9, bb[0]); p.vec(b + 15, bb[1])
        else:
            a, bb = w_group(s + 4) if s < 28 else kv_group(late[s])
            p.sc(b, 's_barrier'); p.sc(b + 1, a[0]); p.sc(b + 2, a[1])
            pos = {0: (3, 9, 15, 21), 1: (3, 8, 13, 17), 2: (3, 7, 10, 14)}[len(extras)]
            for k, d in zip(pos, bb): p.vec(b + k, d)
        if len(extras) == 1:
            for k, x in enumerate(extras[0][0]): p.sc(b + 19 + k, x)
            p.vec(b + 21, extras[0][1])
        elif len(extras) == 2:
            p.sc(b + 15, extras[0][0][0]); p.vec(b + 17, extras[0][1]); p.vec(b + 21, extras[1][1])
        if s + 1 < 32:
            tags = [f'W{s+1}']
            if (s + 1) % 2 == 1 and (s + 2) // 2 < 8: tags.append(f'x{(s+2)//2}')
            if s + 1 == 30: tags += ['K0', 'V0']
            p.sc(b + 17, WV(*tags)); p.sc(b + 18, 's_barrier')
    assert not early
    for H in range(128):
        if H + 2 < 128: put_reads(p, qs(H), w_reads(H + 2))
        if H + 1 < 128: p.sc(qs(H, 5), WL(f'wr{H+1}', *([f'xr{(H+1)//8}'] if (H + 1) % 8 == 0 and H < 63 else [])))
    st = p.stream('xr')
    for kc in range(1, 8):
        for m, r in enumerate(x_reads(kc)): st.add(r, qs(8 * kc - 6, 4) + 4 * m, qs(8 * kc - 2, 5))
    st = p.stream('k0')
    km = [I(f'ds_read_b128 {ar(KMF(ks),4)}, v{vKM+ks}', tag='km', lds=slot_reg(0, 'K0')) for ks in range(4)]
    for m, r in enumerate(km + k_reads(0)): st.add(r, qs(120) + 2 * m, A0 - 4 + max(0, m - 3))
    st = p.stream('v0')
    for m, r in enumerate(v_reads(0)): st.add(r, A0 + m, FBJ - 1)
    for cb in range(4):
        last = {0: 14, 1: 15, 2: 23, 3: 31}[cb]
        st = p.stream(f'qe{cb}'); st2 = p.stream(f'qw{cb}') if cb < 2 else st
        order = [(s2, qt) for s2 in range(2) for qt in range(3)] if cb < 3 else [(0, 0), (0, 1), (0, 2), (1, 0), (1, 1), (1, 2)]
        for s2, qt in order:
            j = 3 * (cb >> 1) + qt
            a, b = C(cb, 2 * s2, qt), C(cb, 2 * s2 + 1, qt)
            dl = mslot[j] - 1
            d1 = min(dl, qs(4 * (25 + cb)) - 1) if cb < 2 else dl
            for base, tt in ((a, 2 * s2), (b, 2 * s2 + 1)):
                e = qs(4 * last + tt, 2 * qt + 1) + 5
                for r in range(4): st.add(f'v_mul_f32 v{base+r}, s{sSC}, v{base+r}', e, d1)
                st.add(f'v_cvt_pk_bf16_f32 v{base}, v{base}, v{base+1}', e, d1)
                st.add(f'v_cvt_pk_bf16_f32 v{base+1}, v{base+2}, v{base+3}', e, d1)
            st.add(f'v_permlane16_swap_b32 v{a}, v{b}', e, d1)
            st.add(f'v_permlane16_swap_b32 v{a+1}, v{b+1}', e, d1)
            q = Q(j, 2 * (cb & 1) + s2)
            assert q == X(cb, s2, qt)
            for r, src in enumerate((a, a + 1, b, b + 1)):
                st2.add(f'v_accvgpr_write_b32 a{q+r}, v{src}', max(e, qs(4 * (25 + cb))), dl)
    st = p.stream('nm')
    for j in range(6):
        n = NM(j); e = min(mslot[j] + 3 + 5, FBJ - 1); dl = FBJ - 1
        for x in (f'v_max3_f32 v{n}, v{n}, v{n+1}, v{n+2}', f'v_min_f32_e64 v{n+1}, -v{n}, -v{n+3}', f'v_min_f32_e64 v{n+2}, -v{n}, -v{n+3}',
                  f'v_mov_b32 v{n}, v{n+1}', f'v_mov_b32 v{n+3}, v{n+1}'):
            st.add(x, e, dl)

    def put_group(base, grp, step=4):
        a, bb = grp
        p.sc(base, a[0]); p.sc(base + 1, a[1])
        for k, d in enumerate(bb): p.vec(base + 2 + step * k, d)
    for i in range(16):
        G = 6 * i
        if i >= 1:
            b = pv[G - 1]
            p.sc(b - 2, WV(f'V{i}')); p.sc(b - 1, 's_barrier')
            vr_ = v_reads(i)
            for dt in range(8):
                p.vec(b + 2 * dt, vr_[2 * dt]); p.vec(b + 2 * dt, vr_[2 * dt + 1])
        else:
            p.sc(seg0[1] + 2, WL('kr0', 'km')); p.sc(seg0[1] + 3, 's_barrier')
        b = qk[G + 5]
        wt = [WV(f'K{i+1}')] if i < 15 else [WV('O0', 'PT')]
        p.sc(b - 2, wt[0]); p.sc(b - 2, WL(f'vr{i}')); p.sc(b - 1, 's_barrier')
        if i < 15:
            for m, r in enumerate(k_reads(i + 1)): p.vec(b + 2 * m, r)
        if i <= 10:
            put_group(seg0[G + 2], kv_group(f'K{i+5}'))
            put_group(seg0[G + 5], kv_group(f'V{i+5}'))
        elif i <= 12:
            p.sc(seg0[G + 2], WL(f'vr{i}')); p.sc(seg0[G + 2] + 1, 's_barrier')
            put_group(seg0[G + 2] + 2, o_group(2 * (i - 11)), 3)
            put_group(seg0[G + 3], o_group(2 * (i - 11) + 1), 3)
        elif i == 13:
            a = [f's_add_u32 m0, s{sDMA}, {slot_off(6)}', f's_xor_b32 s{sSOFF}, s{sRO}, s{sT}']
            p.sc(seg0[G + 2] - 3, f's_lshr_b32 s{sT}, s{sBP}, 2'); p.sc(seg0[G + 2] - 2, f's_add_u32 s{sT}, s{sT}, 4'); p.sc(seg0[G + 2] - 1, f's_lshl_b32 s{sT}, s{sT}, 16')
            put_group(seg0[G + 2], (a, [dma(vOD + j, SWO, f's{sSOFF}', 1024 * j, 'PT', slot_reg(6, 'PT')) for j in range(4)]))
    st = p.stream('oaddr')
    e, dl = seg0[66] + 1, seg0[68] + 2
    st.add(f'v_accvgpr_read_b32 v{vOD}, a{aOD}', e, dl)
    for j in range(1, 4): st.add(f'v_add_u32 v{vOD+j}, {7168*j}, v{vOD}', e, dl)
    e, dl = seg0[89], seg0[95]
    st.add(f'v_accvgpr_read_b32 v{vOA}, a{aOA}', e, dl)
    for j in range(1, 4): st.add(f'v_xor_b32 v{vOA+j}, {32*j}, v{vOA}', e, dl)
    st = p.stream('exp')
    for G in range(96):
        nxt = qk.get(G + 2)
        ec = seg0[G] if G >= 2 else 0
        for kt in range(2):
            s_ = S(G & 1, kt); e = qk[G] + 4 * kt + 3 + 5
            dl = pv[G] - 2
            if nxt is not None: dl = min(dl, nxt + 4 * kt - 1)
            for r in range(4): st.add(f'v_exp_f32 v{s_+r}, v{s_+r}', e, dl)
            st.add(f'v_cvt_pk_bf16_f32 v{P(G&1)+2*kt}, v{s_}, v{s_+1}', max(e, ec), dl)
            st.add(f'v_cvt_pk_bf16_f32 v{P(G&1)+2*kt+1}, v{s_+2}, v{s_+3}', max(e, ec), dl)

    EXS = [((n, hp), 'EX') for n in (6, 7, 8, 9, 0, 1) for hp in range(2)]
    def ex_off(fi): return 24576 + fi * 1024 if fi < 16 else (fi - 16) * 1024
    st = p.stream('eaddr')
    e = seg0[92]; dl = GAP
    p.sc(seg0[91] + 12, f's_mul_i32 s{sT}, s{sLO}, 40960'); p.sc(seg0[91] + 13, f's_mul_i32 s{sT+1}, s{sHI}, 81920')
    p.sc(seg0[91] + 14, f's_sub_u32 s{sST}, 81920, s{sT+1}'); p.sc(seg0[91] + 15, f's_mov_b64 {sr(sBAD,2)}, 0')
    st.add(f'v_accvgpr_read_b32 v{vER}, a{aL16}', e, dl)
    st.add(f'v_add_u32 v{vER}, s{sT}, v{vER}', e, dl)
    st.add(f'v_add_u32 v{vEW}, s{sT+1}, v{vER}', e, dl)
    st.add(f'v_add_u32 v{vER}, s{sST}, v{vER}', e, dl)
    stw = p.stream('exw')
    for hl in range(2):
        st = p.stream(f'norm{hl}')
        for dh in range(2):
            kc = 2 * hl + dh
            for qt in range(3):
                j = 3 * hl + qt
                e = min(pv[90 + j] + 8 + 5, GAP)
                dl0 = GAP if kc == 0 else os_(4 * kc, 2 * qt) - 2
                if dh == 0:
                    rl = vRL + j
                    st.add(f'v_accvgpr_read_b32 v{rl}, a{LA(j)}', e, dl0)
                    st.add(f'v_cmp_nlt_f32 vcc, v{rl}, s{sLIM}'.replace('v_cmp_nlt_f32', 'v_cmp_nlt_f32_e64'), e, dl0)
                    st.add(f'v_rcp_f32 v{rl}, v{rl}', e, dl0)
                    st.add(f's_or_b64 {sr(sBAD,2)}, {sr(sBAD,2)}, vcc', e, dl0)
                for ks in range(2):
                    b = O(j, 4 * dh + 2 * ks)
                    for r in range(8): st.add(f'v_mul_f32 v{b+r}, v{b+r}, v{vRL+j}', e, dl0)
                    for r in range(4): st.add(f'v_cvt_pk_bf16_f32 v{b+r}, v{b+2*r}, v{b+2*r+1}', e, dl0)
    for g in range(4):
        m = 0
        for qt in range(3):
            for ks in range(2):
                fi = 6 * g + 3 * ks + qt
                w = I(f'ds_write_b128 v{vEW}, {OFr(g,ks,qt)} offset:{ex_off(fi)}', tag=f'ew{g}', lds=EXS + [(f'E{g}', 1)])
                pos = os_(4 * (g + 1) + 1, 5) + 6 * m if m < 4 else os_(4 * (g + 1) + 1, 2) + 6 * (m - 3)
                p.vec(pos, w); m += 1
    st = p.stream('exr')
    for g in range(4):
        m = 0
        for qt in range(3):
            for ks in range(2):
                fi = 6 * g + 3 * ks + qt
                r = I(f'ds_read_b128 {ar(PF(g,ks,qt),4)}, v{vER} offset:{ex_off(fi)}', tag=f'er{g}', lds=[(f'E{g}', 1)])
                st.add(r, os_(4 * (g + 3) - 2, 1) + 3 * m, os_(4 * (g + 4) - 2, 5)); m += 1
    tq = O(5, 1)
    st = p.stream('flag')
    e = os_(4 * 5 - 1, 1); dl = os_(4 * 5 + 1, 4)
    p.sc(e + 2, f's_cmp_lg_u64 {sr(sBAD,2)}, 0'); p.sc(e + 3, f's_cselect_b32 s{sT}, 1, {OPT["fb_force"]}'); p.sc(e + 5, f's_lshl_b32 s{sT+1}, s{sW}, 2')
    p.sc(e + 6, f's_andn2_b32 s{sT}, s{sT}, s{sFB}')
    st.add(f'v_mov_b32 v{tq}, s{sT+1}', e + 7, dl); st.add(f'v_mov_b32 v{tq+1}, s{sT}', e + 7, dl)
    st.add(I(f'ds_write_b32 v{tq}, v{tq+1} offset:24576', tag='fw', lds=[('E0', 2)]), e + 7, dl)
    st.add(f'v_mov_b32 v{tq}, 0', e + 7, dl)
    e = os_(4 * 6 - 2, 1); dl = os_(4 * 6, 4)
    st.add(I(f'ds_read_b128 {vr(tq,4)}, v{tq} offset:24576', tag='fr', lds=[('E0', 2)]), e, dl)
    e = os_(4 * 6 + 2, 0); dl = os_(4 * 7, 0)
    st.add(f'v_or3_b32 v{tq}, v{tq}, v{tq+1}, v{tq+2}', e, dl); st.add(f'v_or_b32 v{tq}, v{tq}, v{tq+3}', e, dl)
    st.add(f'v_cmp_ne_u32 vcc, 0, v{tq}', e, dl)
    p.sc(os_(4 * 7 + 1, 2), 's_cbranch_vccnz L_fallback')

    put_reads(p, pv[95] + 1, o_reads(0)); put_reads(p, pv[95] + 5, o_reads(1), 4)
    for s in range(0, 32):
        b = os_(4 * s - 1)
        if s >= 1 and s + 3 < 32:
            a, bb = o_group(s + 3)
            p.sc(b, 's_barrier'); p.sc(b + 1, a[0]); p.sc(b + 2, a[1])
            for k, d in zip((3, 9, 15, 21), bb): p.vec(b + k, d)
        if s + 1 < 32:
            p.sc(b + 17, WV(f'O{s+1}'))
            if 3 <= s + 1 <= 6: p.sc(b + 17, WL(f'ew{s-2}'))
            if s + 1 == 6: p.sc(b + 17, WL('fw'))
            p.sc(b + 18, 's_barrier')
    for H in range(128):
        if H + 2 < 128: put_reads(p, os_(H), o_reads(H + 2))
        if H + 1 < 128: p.sc(os_(H, 5), WL(f'or{H+1}', *([f'er{(H+1)//4-4}'] if (H + 1) % 4 == 0 and 16 <= H + 1 < 32 else [])))
    vST = vRL
    st = p.stream('staddr')
    st.add(f'v_accvgpr_read_b32 v{vST}, a{aL16}', os_(20), os_(30)); st.add(f'v_add_u32 v{vST}, s{sWSB}, v{vST}', os_(20), os_(30))
    st = p.stream('ost')
    for ps in range(4):
        for s2 in range(2):
            for qt in range(3):
                a, b = ACC(ps, 2 * s2, qt), ACC(ps, 2 * s2 + 1, qt)
                e = min(os_(32 * ps + 28 + 2 * s2 + 1, 2 * qt + 1) + 5, END)
                k = 3 * s2 + qt
                dl = END if ps == 3 else os_(32 * (ps + 1) + 2 + 2 * k, 4)
                for d, x in ((a, a), (a + 1, a + 2), (a + 2, b), (a + 3, b + 2)):
                    st.add(f'v_cvt_pk_bf16_f32 v{d}, v{x}, v{x+1}', e, dl)
                if k in (0, 4): st.add(f's_mov_b32 s{sST}, {ps*6144 + k*1024}', e, dl)
                st.add(I(f'buffer_store_dwordx4 {vr(a,4)}, v{vST}, {sr(SWS,4)}, s{sST} offen offset:{(k & 3)*1024} {OPT["ntst"]}', tag='st'), e, dl)
    p.place()
    for sl in (qs(32), qs(64), qs(96), A0, seg0[6], seg0[30], seg0[60], seg0[90], GAP, os_(32), os_(64), os_(96)):
        p.slots[sl].pre += [mk(x) for x in stamp()]
    fin = stamp()
    if OPT['stamps']:
        n = nstamp[0]
        fin += [f's_lshl_b32 s{sT}, s2, 8', f's_lshl_b32 s{sT+1}, s{sW}, 6', f's_add_u32 s{sT}, s{sT}, s{sT+1}', f's_add_u32 s{sT}, s{sT}, 0x4000000']
        fin += [l for l in srd(SOUT, 60, None, 268435456).split('\n') if l]
        fin += ['v_mov_b32 v0, 0']
        for k in range(n):
            fin += [f's_sub_u32 s{sT+1}, s{sSTAMP+2+k}, s{sSTAMP+1+k}' if k else f's_mov_b32 s{sT+1}, s{sSTAMP+2}', f'v_mov_b32 v1, s{sT+1}', f'buffer_store_dword v1, v0, {sr(SOUT,4)}, s{sT} offen offset:{4*k}']
    p.raw(fin + ['L_exit:', 's_endpgm'])
    fb = ['L_fallback:', 's_waitcnt vmcnt(0) lgkmcnt(0)', 's_barrier', f's_mov_b32 s{sFB}, 1', 's_nop 7',
          f'v_accvgpr_read_b32 v0, a{aL16}', 'v_lshrrev_b32 v0, 4, v0'] + [l for l in setup_attn(0, 1).split('\n') if l.strip()]
    fb += [f'v_mov_b32 v{8+j}, 0xff800000' for j in range(6)]
    fb += [f's_mov_b32 s{sKVO}, 0', 'L_fbloop:', f's_mov_b32 m0, s{sDMA}', 's_nop 0']
    fb += [dma(vKV + j, SK, f's{sKVO}', 1024 * j, None, None) for j in range(4)]
    fb += ['s_waitcnt vmcnt(0)', 's_barrier']
    fb += [I(r.t) for r in k_reads(0)] + ['s_waitcnt lgkmcnt(0)', 's_barrier']
    for j in range(6):
        for kt in range(2):
            for ks in range(4):
                d = vr(16 + 8 * j + 4 * kt, 4)
                fb.append(f'{MF} {d}, {ar(KF(kt,ks),4)}, {ar(Q(j,ks),4)}, {d if ks else 0}')
    for j in range(6):
        for r in range(0, 8, 2): fb.append(f'v_max3_f32 v{8+j}, v{8+j}, v{16+8*j+r}, v{16+8*j+r+1}')
    fb += [f's_add_u32 s{sKVO}, s{sKVO}, 8192', f's_cmp_lt_u32 s{sKVO}, 131072', 's_cbranch_scc1 L_fbloop']
    for j in range(6):
        for sw in ('v_permlane32_swap_b32', 'v_permlane16_swap_b32'):
            fb += [f'v_mov_b32 v1, v{8+j}', f'{sw} v1, v{8+j}', f'v_max_f32 v{8+j}, v1, v{8+j}']
        fb += [f'v_sub_f32 v{NM(j)+r}, 0, v{8+j}' for r in range(4)]
    for i in range(5):
        for nm in (f'K{i}', f'V{i}'):
            a, bb = kv_group(nm); fb += a + [I(x.t) for x in bb]
    fb += ['s_waitcnt vmcnt(0)', 's_barrier'] + [I(r.t) for r in k_reads(0) + v_reads(0)] + ['s_waitcnt lgkmcnt(0)', 's_nop 7', 's_branch L_attn']
    p.mark('fallback')
    p.raw(fb)
    lin = p.linearize()
    log = []
    lin = fix_hazards(lin, log)
    errs = check_lds(lin)
    return p, lin, log, errs, setup_items

SCALE = int.from_bytes(__import__('struct').pack('<f', math.log2(math.e) / math.sqrt(128.0)), 'little')

def gen_reduce():
    p = Prog()
    b = f"""
    s_cmp_ge_u32 s2, 768
    s_cbranch_scc1 R_exit
    s_load_dwordx2 s[20:21], s[0:1], 80
    s_load_dwordx2 s[22:23], s[0:1], 96
    v_lshrrev_b32 v1, 6, v0
    v_and_b32 v2, 63, v0
    v_readfirstlane_b32 s3, v1
    s_mul_i32 s12, s2, 2731
    s_lshr_b32 s12, s12, 16
    s_mul_i32 s13, s12, 24
    s_sub_u32 s13, s2, s13
    s_lshl_b32 s13, s13, 2
    s_add_u32 s13, s13, s3
    s_mul_i32 s14, s12, 768
    s_add_u32 s14, s14, s13
    s_lshl_b32 s14, s14, 10
    v_lshlrev_b32 v3, 4, v2
    v_add_u32 v3, s14, v3
    s_waitcnt lgkmcnt(0)
    """ + srd(4, 22, None, 25165824) + srd(8, 20, None, 3145728)
    items = [l for l in b.split('\n') if l.strip()]
    for h in range(8):
        items += [f's_mov_b32 s15, {h*98304}', f'buffer_load_dwordx4 {vr(8+4*h,4)}, v3, s[4:7], s15 offen {OPT["ntred"]}']
    b = f"""
    s_mul_i32 s16, s13, 2731
    s_lshr_b32 s16, s16, 16
    s_mul_i32 s17, s16, 24
    s_sub_u32 s17, s13, s17
    s_mul_i32 s18, s17, 10923
    s_lshr_b32 s18, s18, 16
    s_mul_i32 s19, s18, 6
    s_sub_u32 s19, s17, s19
    s_mul_i32 s24, s19, 21846
    s_lshr_b32 s24, s24, 16
    s_mul_i32 s25, s24, 3
    s_sub_u32 s25, s19, s25
    s_and_b32 s26, s12, 15
    s_lshr_b32 s27, s12, 4
    s_lshl_b32 s28, s26, 1
    s_and_b32 s29, s16, 1
    s_add_u32 s28, s28, s29
    s_mul_i32 s28, s28, 3
    s_add_u32 s28, s28, s25
    s_lshl_b32 s28, s28, 15
    s_lshl_b32 s27, s27, 10
    s_add_u32 s28, s28, s27
    s_lshr_b32 s29, s16, 1
    s_lshl_b32 s29, s29, 9
    s_add_u32 s28, s28, s29
    s_and_b32 s26, s26, 3
    s_xor_b32 s18, s18, s26
    s_lshl_b32 s18, s18, 7
    s_add_u32 s28, s28, s18
    s_lshl_b32 s24, s24, 6
    s_add_u32 s28, s28, s24
    v_bfe_u32 v4, v2, 4, 1
    v_lshrrev_b32 v5, 5, v2
    v_lshl_or_b32 v4, v4, 1, v5
    v_lshlrev_b32 v4, 4, v4
    v_and_b32 v5, 15, v2
    v_lshl_or_b32 v4, v5, 11, v4
    v_add_u32 v4, s28, v4
    s_mov_b32 s30, 0xffff0000
    """
    items += [l for l in b.split('\n') if l.strip()]
    setup = list(items)
    for h in range(8):
        for r in range(4):
            x = 8 + 4 * h + r
            if h == 0:
                items += [f'v_lshlrev_b32 v{40+2*r}, 16, v{x}', f'v_and_b32 v{41+2*r}, s30, v{x}']
            else:
                items += [f'v_lshlrev_b32 v6, 16, v{x}', f'v_and_b32 v7, s30, v{x}', f'v_add_f32 v{40+2*r}, v{40+2*r}, v6', f'v_add_f32 v{41+2*r}, v{41+2*r}, v7']
    items += [f'v_cvt_pk_bf16_f32 v{8+r}, v{40+2*r}, v{41+2*r}' for r in range(4)]
    items += ['v_permlane16_swap_b32 v8, v10', 'v_permlane16_swap_b32 v9, v11', 'buffer_store_dwordx4 v[8:11], v4, s[8:11], 0 offen', 'R_exit:', 's_endpgm']
    p.raw(items)
    lin = fix_hazards(p.linearize())
    return lin, setup

def text(lin):
    return ''.join((x.t if x.k == 'L' else '    ' + x.t) + '\n' for x in lin)

def build(path):
    p, lin, log, errs, setup = gen_main()
    rl, rsetup = gen_reduce()
    s = HEADER_COMMENT
    s += f'; @launch kernel={KNAME} grid=(256,1,1) block=(256,1,1) lds=163840\n'
    s += f'; @launch kernel={RNAME} grid=(768,1,1) block=(256,1,1) lds=0\n'
    s += '.amdgcn_target "amdgcn-amd-amdhsa--gfx950"\n.text\n'
    s += kernel_open(KNAME) + text(lin) + kernel_open(RNAME) + text(rl)
    s += '.section .rodata,"a"\n.p2align 6\n' + kernel_desc(KNAME, 512, 256) + '.p2align 6\n' + kernel_desc(RNAME, 64, 64)
    open(path, 'w').write(s)
    return p, lin, log, errs, setup, rsetup

if __name__ == '__main__':
    path = sys.argv[1] if len(sys.argv) > 1 else 'k.s'
    for a in sys.argv[2:]:
        k, v = a.split('='); OPT[k] = type(OPT[k])(v)
    p, lin, log, errs, setup, rsetup = build(path)
    res, cyc = estimate(p, lin)
    tot = 0
    for r in res:
        print('%-10s mfma %4d cyc %6d over %5d' % r)
        if r[0] != 'fallback': tot += r[2]
    print('total', tot, 'instrs', len(lin), 'nops', len(log), 'lds errs', len(errs))
    for l in log[:40]: print(l)
    for e in errs[:20]: print('ERR', e)
```

```python
import sys, math
from gcore import *
from asmlib import HEADER_COMMENT, kernel_open, kernel_desc, KNAME, vr, ar, sr

MF = 'v_mfma_f32_16x16x32_bf16'
RNAME = 'reduce_partials_kernel'
OPT = dict(stamps=0, dbg='', fb_force=0, ntkv=1, ntw=0, ntx=0, ntst='', ntred='', lst='mr')

SX, SK, SV, SWQ, SWO, SWS, SOUT = 4, 8, 12, 16, 20, 24, 28
sW, sLO, sHI, sH, sBP, sBR, sROT = 3, 62, 63, 64, 65, 66, 67
sDMA, sDMAX, sDMAO, sRQ, sRO, sSOFF, sKVO, sSC, sWSB, sST, sFB, sBAD, sT = 68, 69, 70, 71, 72, 73, 74, 75, 76, 77, 78, 80, 82
sLIM = 79
sSTAMP = 84
def C(cb, t, qt): return 48 * cb + 12 * t + 4 * qt
def O(j, dt): return 32 * j + 4 * dt
def S(b, kt=0): return 192 + 8 * b + 4 * kt
def P(b): return 208 + 4 * b
def NM(j): return 216 + 4 * j
vKA, vVA, vKV = 240, 244, 252
vWA, vXA, vWD, vXD, vKM = 192, 200, 204, 208, 212
vL = 216; T0 = 217
vOA, vRL, vEW, vER, vOD = 240, 244, 250, 251, 252
def X(kc, ks, qt): return 24 * kc + 12 * ks + 4 * qt
def WF(b, ks, hf=0): return 192 + 8 * b + 4 * ks + 2 * hf
def Q(j, ks): return 24 * (2 * (j // 3) + (ks >> 1)) + 12 * (ks & 1) + 4 * (j % 3)
def KF(kt, ks): return 96 + 16 * kt + 4 * ks
def KMF(ks): return 128 + 4 * ks
def VF(dt, hf=0): return 144 + 4 * dt + 2 * hf
def LA(j): return 216 + 4 * j
aONE = 240
aOD, aOA, aL16 = 244, 245, 246
def PF(g, ks, qt): return 96 + 24 * g + 12 * ks + 4 * qt

def slot_off(n): return (n & 1) * 81920 + (n >> 1) * 8192
def slot_reg(n, gen): return [((n, 0), gen), ((n, 1), gen)]

def dma(voff, srd, soff, off, tag, lds):
    nt = ' nt' if {SK: OPT['ntkv'], SV: OPT['ntkv'], SWQ: OPT['ntw'], SWO: OPT['ntw'], SX: OPT['ntx']}[srd] else ''
    return I(f'buffer_load_dwordx4 v{voff}, {sr(srd,4)}, {soff} offen offset:{off}{nt} lds', tag=tag, lds=lds)

def setup_attn(L, t):
    return f"""
    v_lshrrev_b32 v{t}, 4, v{L}
    v_and_b32 v{t+1}, 15, v{L}
    v_lshlrev_b32 v{t+2}, 1, v{t}
    v_xor_b32 v{t+2}, v{t+1}, v{t+2}
    v_lshlrev_b32 v{t+2}, 4, v{t+2}
    v_lshl_or_b32 v{t+2}, v{t}, 8, v{t+2}
    s_lshl_b32 s{sT}, s{sBP}, 1
    s_add_u32 s{sT}, s{sT}, s{sLO}
    s_lshl_b32 s{sT}, s{sT}, 3
    s_add_u32 s{sT}, s{sT}, s{sH}
    s_lshl_b32 s{sT}, s{sT}, 5
    s_add_u32 s{sT}, s{sT}, s{sHI}
    s_lshl_b32 s{sT}, s{sT}, 12
    v_add_u32 v{vKV}, s{sT}, v{t+2}
    v_xor_b32 v{vKV+1}, 0x80, v{vKV}
    v_xor_b32 v{vKV+2}, 16, v{vKV}
    v_xor_b32 v{vKV+3}, 0x90, v{vKV}
    s_mul_i32 s{sT}, s{sLO}, 40960
    s_and_b32 s{sT+1}, s{sROT}, 1
    s_lshl_b32 s{sT+1}, s{sT+1}, 7
    s_add_u32 s{sT+1}, s{sT+1}, s{sT}
    v_bfe_u32 v{t+2}, v{L}, 4, 1
    v_lshrrev_b32 v{t+3}, 5, v{L}
    v_lshl_or_b32 v{t}, v{t+2}, 1, v{t+3}
    v_and_b32 v{t+2}, 7, v{L}
    v_bfe_u32 v{t+3}, v{L}, 3, 1
    v_lshl_or_b32 v{t+2}, v{t+2}, 1, v{t+3}
    v_xor_b32 v{t+2}, v{t+2}, v{t}
    v_lshlrev_b32 v{t+2}, 4, v{t+2}
    v_lshl_or_b32 v{t+2}, v{t+1}, 8, v{t+2}
    v_xor_b32 v{vKA}, s{sT+1}, v{t+2}
    v_xor_b32 v{vKA+1}, 64, v{vKA}
    v_xor_b32 v{vKA+2}, 0x80, v{vKA}
    v_xor_b32 v{vKA+3}, 0xc0, v{vKA}
    v_and_b32 v{t+1}, 3, v{L}
    v_lshlrev_b32 v{t+2}, 1, v{t+1}
    v_xor_b32 v{t+2}, v{t+2}, v{t}
    v_lshlrev_b32 v{t+2}, 4, v{t+2}
    v_lshl_or_b32 v{t+2}, v{t+1}, 8, v{t+2}
    v_xor_b32 v{vKM}, s{sT+1}, v{t+2}
    v_xor_b32 v{vKM+1}, 64, v{vKM}
    v_xor_b32 v{vKM+2}, 0x80, v{vKM}
    v_xor_b32 v{vKM+3}, 0xc0, v{vKM}
    s_add_u32 s{sT}, s{sT}, 81920
    v_bfe_u32 v{t}, v{L}, 2, 3
    v_lshrrev_b32 v{t+1}, 5, v{L}
    v_lshl_or_b32 v{t}, v{t}, 1, v{t+1}
    v_bfe_u32 v{t+1}, v{L}, 1, 1
    v_xor_b32 v{t}, v{t}, v{t+1}
    v_and_b32 v{t+1}, 1, v{L}
    v_lshl_or_b32 v{t}, v{t}, 1, v{t+1}
    v_lshlrev_b32 v{t}, 3, v{t}
    v_lshrrev_b32 v{t+1}, 2, v{L}
    v_lshl_or_b32 v{t}, v{t+1}, 8, v{t}
    v_add_u32 v{vVA}, s{sT}, v{t}
    """ + ''.join(f'v_xor_b32 v{vVA+d}, {hex(d<<5)}, v{vVA}\n' for d in range(1, 8))

def srd(dst, a, b, size):
    s = f's_cselect_b32 s{dst}, s{b}, s{a}\ns_cselect_b32 s{dst+1}, s{b+1}, s{a+1}\n' if b is not None else f's_mov_b32 s{dst}, s{a}\ns_mov_b32 s{dst+1}, s{a+1}\n'
    return s + f's_mov_b32 s{dst+2}, {size}\ns_mov_b32 s{dst+3}, 0x20000\n'

def stage_of(s):
    return (s & 1, s >> 1) if s < 16 else (2 + (s - 16) // 8, s % 8)
def wslot(s): return 5 + (s + 3) % 5
def xslot(kc): return 2 + kc % 3
def kvslot(name): return 2 * (int(name[1:]) % 5) + (name[0] == 'V')

def w_group(s):
    cb, kc = stage_of(s); n = wslot(s)
    return ([f's_add_u32 m0, s{sDMA}, {slot_off(n)}', f's_xor_b32 s{sSOFF}, s{sRQ}, {kc*524288 + cb*128}'],
            [dma(vWD + j, SWQ, f's{sSOFF}', 1024 * j, f'W{s}', slot_reg(n, f'W{s}')) for j in range(4)])
def x_piece(kc, j):
    n = xslot(kc)
    return ([f's_add_u32 m0, s{sDMAX}, {slot_off(n) - 128*kc}'], dma(vXD + j, SX, '0', 1024 * j + 128 * kc, f'x{kc}', slot_reg(n, f'x{kc}')))
def kv_group(name):
    n = kvslot(name); tile = int(name[1:])
    return ([f's_add_u32 m0, s{sDMA}, {slot_off(n)}', f's_mov_b32 s{sKVO}, {tile*8192}'],
            [dma(vKV + j, SK if name[0] == 'K' else SV, f's{sKVO}', 1024 * j, name, slot_reg(n, name)) for j in range(4)])
OPL = [(1, 0), (1, 1), (2, 0), (2, 1)]
def o_place(s): return OPL[s % 4]
def o_off(s): idx, hp = o_place(s); return hp * 40960 + idx * 8192
def o_reg(s): idx, hp = o_place(s); return [((2 * idx, hp), f'O{s}'), ((2 * idx + 1, hp), f'O{s}')]
def o_group(s):
    ps, kc = s >> 3, s & 7
    return ([f's_add_u32 m0, s{sDMAO}, {o_off(s)}', f's_xor_b32 s{sSOFF}, s{sRO}, {kc*65536 + ps*128}'],
            [dma(vOD + j, SWO, f's{sSOFF}', 1024 * j, f'O{s}', o_reg(s)) for j in range(4)])

def w_reads(H):
    s, t = H >> 2, H & 3; n = wslot(s)
    return [I(f'ds_read_b64_tr_b16 {ar(WF(H%3,ks,hf),2)}, v{vWA + 4*(n&1) + t} offset:{(n>>1)*8192 + ks*4096 + hf*512}', tag=f'wr{H}', lds=slot_reg(n, f'W{s}'))
            for ks in range(2) for hf in range(2)]
def o_reads(H):
    s, t = H >> 2, H & 3
    return [I(f'ds_read_b64_tr_b16 {ar(WF(H%3,ks,hf),2)}, v{vOA + t} offset:{o_off(s) + ks*4096 + hf*2048}', tag=f'or{H}', lds=o_reg(s))
            for ks in range(2) for hf in range(2)]
def x_reads(kc):
    n = xslot(kc)
    return [I(f'ds_read_b128 {ar(X(kc,ks,qt),4)}, v{vXA + 2*(n&1) + ks} offset:{(n>>1)*8192 + qt*2048}', tag=f'xr{kc}', lds=slot_reg(n, f'x{kc}'))
            for qt in range(3) for ks in range(2)]
def k_reads(i):
    n = kvslot(f'K{i}')
    return [I(f'ds_read_b128 {ar(KF(kt,ks),4)}, v{vKA + ks} offset:{(n>>1)*8192 + kt*4096}', tag=f'kr{i}', lds=slot_reg(n, f'K{i}'))
            for kt in range(2) for ks in range(4)]
def v_reads(i):
    n = kvslot(f'V{i}')
    return [I(f'ds_read_b64_tr_b16 {ar(VF(dt,hf),2)}, v{vVA + dt} offset:{(n>>1)*8192 + hf*4096}', tag=f'vr{i}', lds=slot_reg(n, f'V{i}'))
            for dt in range(8) for hf in range(2)]

nstamp = [0]
def stamp():
    if not OPT['stamps']: return []
    k = nstamp[0]; nstamp[0] += 1
    return [f's_memtime {sr(sSTAMP, 2)}', 's_waitcnt lgkmcnt(0)', f's_mov_b32 s{sSTAMP+2+k}, s{sSTAMP}']

def put_reads(p, base, reads, limit=5):
    free = [k for k in range(limit) if p.slots[base + k].used() == 0]
    if len(free) >= 4: pos = free[:4]
    elif len(free) == 3: pos = [free[0], free[0], free[1], free[2]]
    else: pos = [free[0], free[0], free[1], free[1]]
    for k, r in zip(pos, reads): p.vec(base + k, r)

def gen_main():
    nstamp[0] = 0
    p = Prog()
    L, t = vL, T0
    p.mark('prolog')
    pro = f"""
    s_cmp_ge_u32 s2, 256
    s_cbranch_scc1 L_exit
    s_load_dwordx16 s[36:51], s[0:1], 0
    s_load_dwordx8 s[52:59], s[0:1], 64
    s_load_dwordx2 s[60:61], s[0:1], 96
    v_lshrrev_b32 v1, 6, v0
    v_and_b32 v{L}, 63, v0
    v_readfirstlane_b32 s{sW}, v1
    s_and_b32 s{sBR}, s2, 1
    s_bfe_u32 s{sH}, s2, 0x20001
    s_bfe_u32 s{sT}, s2, 0x10003
    s_lshl_b32 s{sH}, s{sH}, 1
    s_add_u32 s{sH}, s{sH}, s{sT}
    s_lshr_b32 s{sBP}, s2, 4
    s_and_b32 s{sROT}, s{sBP}, 3
    s_and_b32 s{sLO}, s{sW}, 1
    s_lshr_b32 s{sHI}, s{sW}, 1
    s_lshl_b32 s{sRQ}, s{sROT}, 7
    s_mul_i32 s{sT}, s{sLO}, 40960
    s_lshl_b32 s{sDMA}, s{sHI}, 12
    s_add_u32 s{sDMA}, s{sDMA}, s{sT}
    s_mul_i32 s{sDMAX}, s{sHI}, 3072
    s_add_u32 s{sDMAX}, s{sDMAX}, s{sT}
    v_lshrrev_b32 v{t}, 3, v{L}
    v_and_b32 v{t+1}, 7, v{L}
    v_lshrrev_b32 v{t+2}, 4, v{L}
    v_xor_b32 v{t+2}, v{t+1}, v{t+2}
    v_lshlrev_b32 v{t+2}, 4, v{t+2}
    v_lshl_or_b32 v{t+2}, v{t}, 10, v{t+2}
    s_lshl_b32 s{sT}, s{sBP}, 2
    s_lshl_b32 s{sT+1}, s{sLO}, 1
    s_add_u32 s{sT}, s{sT}, s{sT+1}
    s_add_u32 s{sT}, s{sT}, s{sHI}
    s_mul_i32 s{sT}, s{sT}, 24576
    s_lshl_b32 s{sT+1}, s{sHI}, 6
    v_xor_b32 v{t+2}, s{sT+1}, v{t+2}
    v_add_u32 v{vXD}, s{sT}, v{t+2}
    v_xor_b32 v{vXD+1}, 64, v{vXD}
    v_add_u32 v{vXD+1}, 7168, v{vXD+1}
    v_add_u32 v{vXD+2}, 14336, v{vXD}
    v_bfe_u32 v{t+2}, v{L}, 4, 1
    v_lshlrev_b32 v{t+2}, 1, v{t+2}
    v_xor_b32 v{t+2}, v{t+1}, v{t+2}
    v_lshlrev_b32 v{t+2}, 4, v{t+2}
    v_lshl_or_b32 v{t+2}, v{t}, 13, v{t+2}
    s_lshl_b32 s{sT}, s{sHI}, 8
    s_add_u32 s{sT}, s{sT}, s{sH}
    s_lshl_b32 s{sT}, s{sT}, 1
    s_add_u32 s{sT}, s{sT}, s{sLO}
    s_lshl_b32 s{sT}, s{sT}, 9
    v_add_u32 v{vWD}, s{sT}, v{t+2}
    v_xor_b32 v{vWD+1}, 64, v{vWD}
    v_add_u32 v{vWD+2}, 129024, v{vWD}
    v_add_u32 v{vWD+3}, 193536, v{vWD+1}
    v_add_u32 v{vWD+1}, 64512, v{vWD+1}
    s_cmp_eq_u32 s{sBR}, 1
    s_waitcnt lgkmcnt(0)
    """ + srd(SX, 36, 46, 1572864) + srd(SWQ, 42, 52, 4194304) + srd(SK, 38, 48, 33554432) + srd(SV, 40, 50, 33554432) + srd(SWO, 44, 54, 4194304)
    items = [l for l in pro.split('\n') if l.strip()] + stamp()
    if OPT['stamps']: items += ['s_memrealtime s[32:33]', 's_waitcnt lgkmcnt(0)']
    def xall(kc):
        o = list(x_piece(kc, 0)[0]) + ['s_nop 0']
        return o + [x_piece(kc, j)[1] for j in range(3)]
    def wall(s): a, b = w_group(s); return a + b
    items += xall(0) + wall(0) + wall(1) + xall(1) + wall(2) + wall(3) + xall(2) + wall(4)
    rest = srd(SWS, 60, None, 25165824) + f"""
    s_mov_b32 s{sSC}, {hex(SCALE)}
    s_mov_b32 s{sFB}, 0
    s_mov_b32 s{sLIM}, 0x4e800000
    s_mul_i32 s{sT}, s{sHI}, 40960
    v_bfe_u32 v{t}, v{L}, 3, 2
    v_and_b32 v{t+1}, 3, v{L}
    v_lshl_or_b32 v{t}, v{t}, 2, v{t+1}
    v_lshlrev_b32 v{t}, 3, v{t}
    v_bfe_u32 v{t+1}, v{L}, 2, 2
    v_lshl_or_b32 v{t}, v{t+1}, 7, v{t}
    v_lshrrev_b32 v{t+1}, 4, v{L}
    v_lshl_or_b32 v{t+2}, v{t+1}, 10, v{t}
    v_add_u32 v{vWA}, s{sT}, v{t+2}
    v_xor_b32 v{vWA+1}, 32, v{vWA}
    v_xor_b32 v{vWA+2}, 64, v{vWA}
    v_xor_b32 v{vWA+3}, 0x60, v{vWA}
    v_add_u32 v{vWA+4}, 81920, v{vWA}
    v_add_u32 v{vWA+5}, 81920, v{vWA+1}
    v_add_u32 v{vWA+6}, 81920, v{vWA+2}
    v_add_u32 v{vWA+7}, 81920, v{vWA+3}
    s_lshl_b32 s{sT}, s{sT}, 1
    v_lshl_or_b32 v{t+2}, v{t+1}, 9, v{t}
    v_add_u32 v{t+2}, s{sT}, v{t+2}
    v_accvgpr_write_b32 a{aOA}, v{t+2}
    s_mul_i32 s{sT}, s{sLO}, 40960
    v_bfe_u32 v{t}, v{L}, 1, 3
    v_xor_b32 v{t}, v{t}, v{t+1}
    v_lshlrev_b32 v{t}, 4, v{t}
    v_and_b32 v{t+2}, 15, v{L}
    v_lshl_or_b32 v{t}, v{t+2}, 7, v{t}
    v_add_u32 v{vXA}, s{sT}, v{t}
    v_xor_b32 v{vXA+1}, 64, v{vXA}
    v_add_u32 v{vXA+2}, 81920, v{vXA}
    v_add_u32 v{vXA+3}, 81920, v{vXA+1}
    v_lshlrev_b32 v{t+1}, 1, v{t+1}
    v_and_b32 v{t}, 7, v{L}
    v_xor_b32 v{t}, v{t}, v{t+1}
    v_lshlrev_b32 v{t}, 4, v{t}
    v_lshrrev_b32 v{t+1}, 3, v{L}
    v_lshl_or_b32 v{t}, v{t+1}, 10, v{t}
    s_lshl_b32 s{sT}, s{sH}, 4
    s_add_u32 s{sT}, s{sT}, s{sHI}
    s_lshl_b32 s{sT}, s{sT}, 6
    s_add_u32 s{sT}, s{sT}, s{sLO}
    s_lshl_b32 s{sT}, s{sT}, 9
    v_add_u32 v{t}, s{sT}, v{t}
    v_accvgpr_write_b32 a{aOD}, v{t}
    v_lshlrev_b32 v{t}, 4, v{L}
    v_accvgpr_write_b32 a{aL16}, v{t}
    v_mov_b32 v{t}, 0x3f803f80
    v_accvgpr_write_b32 a{aONE}, v{t}
    v_accvgpr_write_b32 a{aONE+1}, v{t}
    v_accvgpr_write_b32 a{aONE+2}, v{t}
    v_accvgpr_write_b32 a{aONE+3}, v{t}
    s_mul_i32 s{sDMAO}, s{sLO}, 81920
    s_lshl_b32 s{sT}, s{sHI}, 12
    s_add_u32 s{sDMAO}, s{sDMAO}, s{sT}
    s_lshl_b32 s{sRO}, s{sLO}, 2
    s_and_b32 s{sT}, s{sROT}, 2
    s_or_b32 s{sRO}, s{sRO}, s{sT}
    s_lshl_b32 s{sRO}, s{sRO}, 16
    s_or_b32 s{sRO}, s{sRO}, s{sRQ}
    s_lshl_b32 s{sT}, s{sBR}, 4
    s_add_u32 s{sT}, s{sT}, s{sBP}
    s_lshl_b32 s{sT}, s{sT}, 3
    s_add_u32 s{sT}, s{sT}, s{sH}
    s_lshl_b32 s{sT}, s{sT}, 2
    s_add_u32 s{sT}, s{sT}, s{sW}
    s_mul_i32 s{sWSB}, s{sT}, 24576
    """ + setup_attn(L, t)
    items += [l for l in rest.split('\n') if l.strip()]
    setup_items = list(items)
    xr = x_reads(0)
    items += [WV('x0', 'W0'), 's_barrier'] + stamp() + xr[:2] + w_reads(0) + xr[2:] + w_reads(1)
    p.raw(items)

    p.mark('qproj')
    Q0 = p.n()
    for s in range(32):
        cb, kc = stage_of(s)
        for tt in range(4):
            H = 4 * s + tt
            for qt in range(3):
                for ks in range(2):
                    d = vr(C(cb, tt, qt), 4)
                    p.mfma(f'{MF} {d}, {ar(WF(H%3,ks),4)}, {ar(X(kc,ks,qt),4)}, {d if (kc or ks) else 0}')
    qs = lambda H, k=0: Q0 + 6 * H + k
    p.mark('attn0')
    A0 = p.n()
    mslot = {}; qk = {}; pv = {}; seg0 = {}
    def emit_max(j):
        mslot[j] = p.n()
        for ks in range(4):
            d = vr(NM(j), 4)
            p.mfma(f'{MF} {d}, {ar(KMF(ks),4)}, {ar(Q(j,ks),4)}, {d if ks else 0}')
    def emit_qk(G):
        j = G % 6; qk[G] = p.n()
        for kt in range(2):
            for ks in range(4):
                d = vr(S(G & 1, kt), 4)
                p.mfma(f'{MF} {d}, {ar(KF(kt,ks),4)}, {ar(Q(j,ks),4)}, {d if ks else vr(NM(j),4)}')
    def emit_pv(G):
        j = G % 6; pv[G] = p.n()
        for dt in range(8):
            d = vr(O(j, dt), 4)
            p.mfma(f'{MF} {d}, {ar(VF(dt),4)}, {vr(P(G&1),4)}, {d if G >= 6 else 0}')
        d = ar(LA(j), 4)
        p.mfma(f'{MF} {d}, {ar(aONE,4)}, {vr(P(G&1),4)}, {d if G >= 6 else 0}')
    for j in range(6): emit_max(j)
    FBJ = p.raw(['L_attn:'])
    emit_qk(0)
    for G in range(96):
        if G % 6 == 0 and G: p.mark(f'tile{G//6}')
        seg0[G] = p.n()
        if G + 1 < 96: emit_qk(G + 1)
        if G >= 1: emit_pv(G - 1)
    seg0[96] = p.n()
    emit_pv(95)
    p.mark('oproj')
    GAP = p.raw([])
    O0 = p.n()
    def OFr(kc, ks, qt):
        if kc < 4: return vr(O(3 * (kc >> 1) + qt, 4 * (kc & 1) + 2 * ks), 4)
        return ar(PF(kc - 4, ks, qt), 4)
    def ACC(ps, tt, qt):
        if ps & 1 == 0: return 192 + 12 * tt + 4 * qt
        return O(qt, 2 * tt + 1)
    for s in range(32):
        ps, kc = s >> 3, s & 7
        for tt in range(4):
            H = 4 * s + tt
            for qt in range(3):
                for ks in range(2):
                    d = vr(ACC(ps, tt, qt), 4)
                    p.mfma(f'{MF} {d}, {ar(WF(H%3,ks),4)}, {OFr(kc,ks,qt)}, {d if (kc or ks) else 0}')
    os_ = lambda H, k=0: O0 + 6 * H + k
    p.mark('tail')
    END = p.raw([])

    early = [(nm, j) for nm in ('K0', 'V0', 'K1', 'V1', 'K2') for j in range(4)]
    late = {28: 'V2', 29: 'K3', 30: 'V3', 31: 'K4', 32: 'V4'}
    for s in range(33):
        b = qs(4 * s - 1)
        extras = []
        if s < 10:
            kc = s // 2 + 3
            extras = [x_piece(kc, 0)] if s % 2 == 0 else [x_piece(kc, 1), x_piece(kc, 2)]
        elif s < 28:
            nm, j = early.pop(0); a, bb = kv_group(nm); extras = [(a, bb[j])]
        if s == 0:
            a, bb = kv_group('K0'); early = early[2:]
            p.sc(b + 7, a[0]); p.sc(b + 8, a[1]); p.vec(b + 9, bb[0]); p.vec(b + 15, bb[1])
        else:
            a, bb = w_group(s + 4) if s < 28 else kv_group(late[s])
            p.sc(b, 's_barrier'); p.sc(b + 1, a[0]); p.sc(b + 2, a[1])
            pos = {0: (3, 9, 15, 21), 1: (3, 8, 13, 17), 2: (3, 7, 10, 14)}[len(extras)]
            for k, d in zip(pos, bb): p.vec(b + k, d)
        if len(extras) == 1:
            for k, x in enumerate(extras[0][0]): p.sc(b + 19 + k, x)
            p.vec(b + 21, extras[0][1])
        elif len(extras) == 2:
            p.sc(b + 15, extras[0][0][0]); p.vec(b + 17, extras[0][1]); p.vec(b + 21, extras[1][1])
        if s + 1 < 32:
            tags = [f'W{s+1}']
            if (s + 1) % 2 == 1 and (s + 2) // 2 < 8: tags.append(f'x{(s+2)//2}')
            if s + 1 == 30: tags += ['K0', 'V0']
            p.sc(b + 17, WV(*tags)); p.sc(b + 18, 's_barrier')
    assert not early
    for H in range(128):
        if H + 2 < 128: put_reads(p, qs(H), w_reads(H + 2))
        if H + 1 < 128: p.sc(qs(H, 5), WL(f'wr{H+1}', *([f'xr{(H+1)//8}'] if (H + 1) % 8 == 0 and H < 63 else [])))
    st = p.stream('xr')
    for kc in range(1, 8):
        for m, r in enumerate(x_reads(kc)): st.add(r, qs(8 * kc - 6, 4) + 4 * m, qs(8 * kc - 2, 5))
    st = p.stream('k0')
    km = [I(f'ds_read_b128 {ar(KMF(ks),4)}, v{vKM+ks}', tag='km', lds=slot_reg(0, 'K0')) for ks in range(4)]
    for m, r in enumerate(km + k_reads(0)): st.add(r, qs(120) + 2 * m, A0 - 4 + max(0, m - 3))
    st = p.stream('v0')
    for m, r in enumerate(v_reads(0)): st.add(r, A0 + m, FBJ - 1)
    for cb in range(4):
        last = {0: 14, 1: 15, 2: 23, 3: 31}[cb]
        st = p.stream(f'qe{cb}'); st2 = p.stream(f'qw{cb}') if cb < 2 else st
        order = [(s2, qt) for s2 in range(2) for qt in range(3)] if cb < 3 else [(0, 0), (0, 1), (0, 2), (1, 0), (1, 1), (1, 2)]
        for s2, qt in order:
            j = 3 * (cb >> 1) + qt
            a, b = C(cb, 2 * s2, qt), C(cb, 2 * s2 + 1, qt)
            dl = mslot[j] - 1
            d1 = min(dl, qs(4 * (25 + cb)) - 1) if cb < 2 else dl
            for base, tt in ((a, 2 * s2), (b, 2 * s2 + 1)):
                e = qs(4 * last + tt, 2 * qt + 1) + 5
                for r in range(4): st.add(f'v_mul_f32 v{base+r}, s{sSC}, v{base+r}', e, d1)
                st.add(f'v_cvt_pk_bf16_f32 v{base}, v{base}, v{base+1}', e, d1)
                st.add(f'v_cvt_pk_bf16_f32 v{base+1}, v{base+2}, v{base+3}', e, d1)
            st.add(f'v_permlane16_swap_b32 v{a}, v{b}', e, d1)
            st.add(f'v_permlane16_swap_b32 v{a+1}, v{b+1}', e, d1)
            q = Q(j, 2 * (cb & 1) + s2)
            assert q == X(cb, s2, qt)
            for r, src in enumerate((a, a + 1, b, b + 1)):
                st2.add(f'v_accvgpr_write_b32 a{q+r}, v{src}', max(e, qs(4 * (25 + cb))), dl)
    st = p.stream('nm')
    for j in range(6):
        n = NM(j); e = min(mslot[j] + 3 + 5, FBJ - 1); dl = FBJ - 1
        for x in (f'v_max3_f32 v{n}, v{n}, v{n+1}, v{n+2}', f'v_min_f32_e64 v{n+1}, -v{n}, -v{n+3}', f'v_min_f32_e64 v{n+2}, -v{n}, -v{n+3}',
                  f'v_mov_b32 v{n}, v{n+1}', f'v_mov_b32 v{n+3}, v{n+1}'):
            st.add(x, e, dl)

    def put_group(base, grp, step=4):
        a, bb = grp
        p.sc(base, a[0]); p.sc(base + 1, a[1])
        for k, d in enumerate(bb): p.vec(base + 2 + step * k, d)
    for i in range(16):
        G = 6 * i
        if i >= 1:
            b = pv[G - 1]
            p.sc(b - 2, WV(f'V{i}')); p.sc(b - 1, 's_barrier')
            vr_ = v_reads(i)
            for dt in range(8):
                p.vec(b + 2 * dt, vr_[2 * dt]); p.vec(b + 2 * dt, vr_[2 * dt + 1])
        else:
            p.sc(seg0[1] + 2, WL('kr0', 'km')); p.sc(seg0[1] + 3, 's_barrier')
        b = qk[G + 5]
        wt = [WV(f'K{i+1}')] if i < 15 else [WV('O0', 'PT')]
        p.sc(b - 2, wt[0]); p.sc(b - 2, WL(f'vr{i}')); p.sc(b - 1, 's_barrier')
        if i < 15:
            for m, r in enumerate(k_reads(i + 1)): p.vec(b + 2 * m, r)
        if i <= 10:
            put_group(seg0[G + 2], kv_group(f'K{i+5}'))
            put_group(seg0[G + 5], kv_group(f'V{i+5}'))
        elif i <= 12:
            p.sc(seg0[G + 2], WL(f'vr{i}')); p.sc(seg0[G + 2] + 1, 's_barrier')
            put_group(seg0[G + 2] + 2, o_group(2 * (i - 11)), 3)
            put_group(seg0[G + 3], o_group(2 * (i - 11) + 1), 3)
        elif i == 13:
            a = [f's_add_u32 m0, s{sDMA}, {slot_off(6)}', f's_xor_b32 s{sSOFF}, s{sRO}, s{sT}']
            p.sc(seg0[G + 2] - 3, f's_lshr_b32 s{sT}, s{sBP}, 2'); p.sc(seg0[G + 2] - 2, f's_add_u32 s{sT}, s{sT}, 4'); p.sc(seg0[G + 2] - 1, f's_lshl_b32 s{sT}, s{sT}, 16')
            put_group(seg0[G + 2], (a, [dma(vOD + j, SWO, f's{sSOFF}', 1024 * j, 'PT', slot_reg(6, 'PT')) for j in range(4)]))
    st = p.stream('oaddr')
    e, dl = seg0[66] + 1, seg0[68] + 2
    st.add(f'v_accvgpr_read_b32 v{vOD}, a{aOD}', e, dl)
    for j in range(1, 4): st.add(f'v_add_u32 v{vOD+j}, {7168*j}, v{vOD}', e, dl)
    e, dl = seg0[89], seg0[95]
    st.add(f'v_accvgpr_read_b32 v{vOA}, a{aOA}', e, dl)
    for j in range(1, 4): st.add(f'v_xor_b32 v{vOA+j}, {32*j}, v{vOA}', e, dl)
    st = p.stream('exp')
    for G in range(96):
        nxt = qk.get(G + 2)
        ec = seg0[G] if G >= 2 else 0
        for kt in range(2):
            s_ = S(G & 1, kt); e = qk[G] + 4 * kt + 3 + 5
            dl = pv[G] - 2
            if nxt is not None: dl = min(dl, nxt + 4 * kt - 1)
            for r in range(4): st.add(f'v_exp_f32 v{s_+r}, v{s_+r}', e, dl)
            st.add(f'v_cvt_pk_bf16_f32 v{P(G&1)+2*kt}, v{s_}, v{s_+1}', max(e, ec), dl)
            st.add(f'v_cvt_pk_bf16_f32 v{P(G&1)+2*kt+1}, v{s_+2}, v{s_+3}', max(e, ec), dl)

    EXS = [((n, hp), 'EX') for n in (6, 7, 8, 9, 0, 1) for hp in range(2)]
    def ex_off(fi): return 24576 + fi * 1024 if fi < 16 else (fi - 16) * 1024
    st = p.stream('eaddr')
    e = seg0[92]; dl = GAP
    p.sc(seg0[91] + 12, f's_mul_i32 s{sT}, s{sLO}, 40960'); p.sc(seg0[91] + 13, f's_mul_i32 s{sT+1}, s{sHI}, 81920')
    p.sc(seg0[91] + 14, f's_sub_u32 s{sST}, 81920, s{sT+1}'); p.sc(seg0[91] + 15, f's_mov_b64 {sr(sBAD,2)}, 0')
    st.add(f'v_accvgpr_read_b32 v{vER}, a{aL16}', e, dl)
    st.add(f'v_add_u32 v{vER}, s{sT}, v{vER}', e, dl)
    st.add(f'v_add_u32 v{vEW}, s{sT+1}, v{vER}', e, dl)
    st.add(f'v_add_u32 v{vER}, s{sST}, v{vER}', e, dl)
    stw = p.stream('exw')
    for hl in range(2):
        st = p.stream(f'norm{hl}')
        for dh in range(2):
            kc = 2 * hl + dh
            for qt in range(3):
                j = 3 * hl + qt
                e = min(pv[90 + j] + 8 + 5, GAP)
                dl0 = GAP if kc == 0 else os_(4 * kc, 2 * qt) - 2
                if dh == 0:
                    rl = vRL + j
                    st.add(f'v_accvgpr_read_b32 v{rl}, a{LA(j)}', e, dl0)
                    st.add(f'v_cmp_nlt_f32 vcc, v{rl}, s{sLIM}'.replace('v_cmp_nlt_f32', 'v_cmp_nlt_f32_e64'), e, dl0)
                    st.add(f'v_rcp_f32 v{rl}, v{rl}', e, dl0)
                    st.add(f's_or_b64 {sr(sBAD,2)}, {sr(sBAD,2)}, vcc', e, dl0)
                for ks in range(2):
                    b = O(j, 4 * dh + 2 * ks)
                    for r in range(8): st.add(f'v_mul_f32 v{b+r}, v{b+r}, v{vRL+j}', e, dl0)
                    for r in range(4): st.add(f'v_cvt_pk_bf16_f32 v{b+r}, v{b+2*r}, v{b+2*r+1}', e, dl0)
    for g in range(4):
        m = 0
        for qt in range(3):
            for ks in range(2):
                fi = 6 * g + 3 * ks + qt
                w = I(f'ds_write_b128 v{vEW}, {OFr(g,ks,qt)} offset:{ex_off(fi)}', tag=f'ew{g}', lds=EXS + [(f'E{g}', 1)])
                pos = os_(4 * (g + 1) + 1, 5) + 6 * m if m < 4 else os_(4 * (g + 1) + 1, 2) + 6 * (m - 3)
                p.vec(pos, w); m += 1
    st = p.stream('exr')
    for g in range(4):
        m = 0
        for qt in range(3):
            for ks in range(2):
                fi = 6 * g + 3 * ks + qt
                r = I(f'ds_read_b128 {ar(PF(g,ks,qt),4)}, v{vER} offset:{ex_off(fi)}', tag=f'er{g}', lds=[(f'E{g}', 1)])
                st.add(r, os_(4 * (g + 3) - 2, 1) + 3 * m, os_(4 * (g + 4) - 2, 5)); m += 1
    tq = O(5, 1)
    st = p.stream('flag')
    e = os_(4 * 5 - 1, 1); dl = os_(4 * 5 + 1, 4)
    p.sc(e + 2, f's_cmp_lg_u64 {sr(sBAD,2)}, 0'); p.sc(e + 3, f's_cselect_b32 s{sT}, 1, {OPT["fb_force"]}'); p.sc(e + 5, f's_lshl_b32 s{sT+1}, s{sW}, 2')
    p.sc(e + 6, f's_andn2_b32 s{sT}, s{sT}, s{sFB}')
    st.add(f'v_mov_b32 v{tq}, s{sT+1}', e + 7, dl); st.add(f'v_mov_b32 v{tq+1}, s{sT}', e + 7, dl)
    st.add(I(f'ds_write_b32 v{tq}, v{tq+1} offset:24576', tag='fw', lds=[('E0', 2)]), e + 7, dl)
    st.add(f'v_mov_b32 v{tq}, 0', e + 7, dl)
    e = os_(4 * 6 - 2, 1); dl = os_(4 * 6, 4)
    st.add(I(f'ds_read_b128 {vr(tq,4)}, v{tq} offset:24576', tag='fr', lds=[('E0', 2)]), e, dl)
    e = os_(4 * 6 + 2, 0); dl = os_(4 * 7, 0)
    st.add(f'v_or3_b32 v{tq}, v{tq}, v{tq+1}, v{tq+2}', e, dl); st.add(f'v_or_b32 v{tq}, v{tq}, v{tq+3}', e, dl)
    st.add(f'v_cmp_ne_u32 vcc, 0, v{tq}', e, dl)
    p.sc(os_(4 * 7 + 1, 2), 's_cbranch_vccnz L_fallback')

    put_reads(p, pv[95] + 1, o_reads(0)); put_reads(p, pv[95] + 5, o_reads(1), 4)
    for s in range(0, 32):
        b = os_(4 * s - 1)
        if s >= 1 and s + 3 < 32:
            a, bb = o_group(s + 3)
            p.sc(b, 's_barrier'); p.sc(b + 1, a[0]); p.sc(b + 2, a[1])
            for k, d in zip((3, 9, 15, 21), bb): p.vec(b + k, d)
        if s + 1 < 32:
            p.sc(b + 17, WV(f'O{s+1}'))
            if 3 <= s + 1 <= 6: p.sc(b + 17, WL(f'ew{s-2}'))
            if s + 1 == 6: p.sc(b + 17, WL('fw'))
            p.sc(b + 18, 's_barrier')
    for H in range(128):
        if H + 2 < 128: put_reads(p, os_(H), o_reads(H + 2))
        if H + 1 < 128: p.sc(os_(H, 5), WL(f'or{H+1}', *([f'er{(H+1)//4-4}'] if (H + 1) % 4 == 0 and 16 <= H + 1 < 32 else [])))
    vST = vRL
    st = p.stream('staddr')
    st.add(f'v_accvgpr_read_b32 v{vST}, a{aL16}', os_(20), os_(30)); st.add(f'v_add_u32 v{vST}, s{sWSB}, v{vST}', os_(20), os_(30))
    st = p.stream('ost')
    for ps in range(4):
        for s2 in range(2):
            for qt in range(3):
                a, b = ACC(ps, 2 * s2, qt), ACC(ps, 2 * s2 + 1, qt)
                e = min(os_(32 * ps + 28 + 2 * s2 + 1, 2 * qt + 1) + 5, END)
                k = 3 * s2 + qt
                dl = END if ps == 3 else os_(32 * (ps + 1) + 2 + 2 * k, 4)
                for d, x in ((a, a), (a + 1, a + 2), (a + 2, b), (a + 3, b + 2)):
                    st.add(f'v_cvt_pk_bf16_f32 v{d}, v{x}, v{x+1}', e, dl)
                if k in (0, 4): st.add(f's_mov_b32 s{sST}, {ps*6144 + k*1024}', e, dl)
                st.add(I(f'buffer_store_dwordx4 {vr(a,4)}, v{vST}, {sr(SWS,4)}, s{sST} offen offset:{(k & 3)*1024} {OPT["ntst"]}', tag='st'), e, dl)
    p.place()
    for sl in (qs(32), qs(64), qs(96), A0, seg0[6], seg0[30], seg0[60], seg0[90], GAP, os_(32), os_(64), os_(96)):
        p.slots[sl].pre += [mk(x) for x in stamp()]
    fin = stamp()
    if OPT['stamps']:
        n = nstamp[0]
        fin += [f's_lshl_b32 s{sT}, s2, 8', f's_lshl_b32 s{sT+1}, s{sW}, 6', f's_add_u32 s{sT}, s{sT}, s{sT+1}', f's_add_u32 s{sT}, s{sT}, 0x4000000']
        fin += [l for l in srd(SOUT, 60, None, 268435456).split('\n') if l]
        fin += ['v_mov_b32 v0, 0', 's_waitcnt vmcnt(0)', 's_memrealtime s[34:35]', 's_waitcnt lgkmcnt(0)', 'v_mov_b32 v1, s34', f'buffer_store_dword v1, v0, {sr(SOUT,4)}, s{sT} offen offset:60']
        for k in range(n):
            fin += [f's_sub_u32 s{sT+1}, s{sSTAMP+2+k}, s{sSTAMP+1+k}' if k else f's_mov_b32 s{sT+1}, s32', f'v_mov_b32 v1, s{sT+1}', f'buffer_store_dword v1, v0, {sr(SOUT,4)}, s{sT} offen offset:{4*k}']
    p.raw(fin + ['L_exit:', 's_endpgm'])
    fb = ['L_fallback:', 's_waitcnt vmcnt(0) lgkmcnt(0)', 's_barrier', f's_mov_b32 s{sFB}, 1', 's_nop 7',
          f'v_accvgpr_read_b32 v0, a{aL16}', 'v_lshrrev_b32 v0, 4, v0'] + [l for l in setup_attn(0, 1).split('\n') if l.strip()]
    fb += [f'v_mov_b32 v{8+j}, 0xff800000' for j in range(6)]
    fb += [f's_mov_b32 s{sKVO}, 0', 'L_fbloop:', f's_mov_b32 m0, s{sDMA}', 's_nop 0']
    fb += [dma(vKV + j, SK, f's{sKVO}', 1024 * j, None, None) for j in range(4)]
    fb += ['s_waitcnt vmcnt(0)', 's_barrier']
    fb += [I(r.t) for r in k_reads(0)] + ['s_waitcnt lgkmcnt(0)', 's_barrier']
    for j in range(6):
        for kt in range(2):
            for ks in range(4):
                d = vr(16 + 8 * j + 4 * kt, 4)
                fb.append(f'{MF} {d}, {ar(KF(kt,ks),4)}, {ar(Q(j,ks),4)}, {d if ks else 0}')
    for j in range(6):
        for r in range(0, 8, 2): fb.append(f'v_max3_f32 v{8+j}, v{8+j}, v{16+8*j+r}, v{16+8*j+r+1}')
    fb += [f's_add_u32 s{sKVO}, s{sKVO}, 8192', f's_cmp_lt_u32 s{sKVO}, 131072', 's_cbranch_scc1 L_fbloop']
    for j in range(6):
        for sw in ('v_permlane32_swap_b32', 'v_permlane16_swap_b32'):
            fb += [f'v_mov_b32 v1, v{8+j}', f'{sw} v1, v{8+j}', f'v_max_f32 v{8+j}, v1, v{8+j}']
        fb += [f'v_sub_f32 v{NM(j)+r}, 0, v{8+j}' for r in range(4)]
    for i in range(5):
        for nm in (f'K{i}', f'V{i}'):
            a, bb = kv_group(nm); fb += a + [I(x.t) for x in bb]
    fb += ['s_waitcnt vmcnt(0)', 's_barrier'] + [I(r.t) for r in k_reads(0) + v_reads(0)] + ['s_waitcnt lgkmcnt(0)', 's_nop 7', 's_branch L_attn']
    p.mark('fallback')
    p.raw(fb)
    lin = p.linearize()
    log = []
    lin = fix_hazards(lin, log)
    errs = check_lds(lin)
    return p, lin, log, errs, setup_items

SCALE = int.from_bytes(__import__('struct').pack('<f', math.log2(math.e) / math.sqrt(128.0)), 'little')

def gen_reduce():
    p = Prog()
    b = f"""
    s_cmp_ge_u32 s2, 768
    s_cbranch_scc1 R_exit
    s_load_dwordx2 s[20:21], s[0:1], 80
    s_load_dwordx2 s[22:23], s[0:1], 96
    v_lshrrev_b32 v1, 6, v0
    v_and_b32 v2, 63, v0
    v_readfirstlane_b32 s3, v1
    s_mul_i32 s12, s2, 2731
    s_lshr_b32 s12, s12, 16
    s_mul_i32 s13, s12, 24
    s_sub_u32 s13, s2, s13
    s_lshl_b32 s13, s13, 2
    s_add_u32 s13, s13, s3
    s_mul_i32 s14, s12, 768
    s_add_u32 s14, s14, s13
    s_lshl_b32 s14, s14, 10
    v_lshlrev_b32 v3, 4, v2
    v_add_u32 v3, s14, v3
    s_waitcnt lgkmcnt(0)
    """ + srd(4, 22, None, 25165824) + srd(8, 20, None, 3145728)
    items = [l for l in b.split('\n') if l.strip()]
    for h in range(8):
        items += [f's_mov_b32 s15, {h*98304}', f'buffer_load_dwordx4 {vr(8+4*h,4)}, v3, s[4:7], s15 offen {OPT["ntred"]}']
    b = f"""
    s_mul_i32 s16, s13, 2731
    s_lshr_b32 s16, s16, 16
    s_mul_i32 s17, s16, 24
    s_sub_u32 s17, s13, s17
    s_mul_i32 s18, s17, 10923
    s_lshr_b32 s18, s18, 16
    s_mul_i32 s19, s18, 6
    s_sub_u32 s19, s17, s19
    s_mul_i32 s24, s19, 21846
    s_lshr_b32 s24, s24, 16
    s_mul_i32 s25, s24, 3
    s_sub_u32 s25, s19, s25
    s_and_b32 s26, s12, 15
    s_lshr_b32 s27, s12, 4
    s_lshl_b32 s28, s26, 1
    s_and_b32 s29, s16, 1
    s_add_u32 s28, s28, s29
    s_mul_i32 s28, s28, 3
    s_add_u32 s28, s28, s25
    s_lshl_b32 s28, s28, 15
    s_lshl_b32 s27, s27, 10
    s_add_u32 s28, s28, s27
    s_lshr_b32 s29, s16, 1
    s_lshl_b32 s29, s29, 9
    s_add_u32 s28, s28, s29
    s_and_b32 s26, s26, 3
    s_xor_b32 s18, s18, s26
    s_lshl_b32 s18, s18, 7
    s_add_u32 s28, s28, s18
    s_lshl_b32 s24, s24, 6
    s_add_u32 s28, s28, s24
    v_bfe_u32 v4, v2, 4, 1
    v_lshrrev_b32 v5, 5, v2
    v_lshl_or_b32 v4, v4, 1, v5
    v_lshlrev_b32 v4, 4, v4
    v_and_b32 v5, 15, v2
    v_lshl_or_b32 v4, v5, 11, v4
    v_add_u32 v4, s28, v4
    s_mov_b32 s30, 0xffff0000
    """
    items += [l for l in b.split('\n') if l.strip()]
    setup = list(items)
    for h in range(8):
        for r in range(4):
            x = 8 + 4 * h + r
            if h == 0:
                items += [f'v_lshlrev_b32 v{40+2*r}, 16, v{x}', f'v_and_b32 v{41+2*r}, s30, v{x}']
            else:
                items += [f'v_lshlrev_b32 v6, 16, v{x}', f'v_and_b32 v7, s30, v{x}', f'v_add_f32 v{40+2*r}, v{40+2*r}, v6', f'v_add_f32 v{41+2*r}, v{41+2*r}, v7']
    items += [f'v_cvt_pk_bf16_f32 v{8+r}, v{40+2*r}, v{41+2*r}' for r in range(4)]
    items += ['v_permlane16_swap_b32 v8, v10', 'v_permlane16_swap_b32 v9, v11', 'buffer_store_dwordx4 v[8:11], v4, s[8:11], 0 offen', 'R_exit:', 's_endpgm']
    p.raw(items)
    lin = fix_hazards(p.linearize())
    return lin, setup

def text(lin):
    return ''.join((x.t if x.k == 'L' else '    ' + x.t) + '\n' for x in lin)

def build(path):
    p, lin, log, errs, setup = gen_main()
    rl, rsetup = gen_reduce()
    s = HEADER_COMMENT
    for c in OPT['lst']:
        if c == 'm': s += f'; @launch kernel={KNAME} grid=(256,1,1) block=(256,1,1) lds=163840\n'
        if c == 'r': s += f'; @launch kernel={RNAME} grid=(768,1,1) block=(256,1,1) lds=0\n'
    s += '.amdgcn_target "amdgcn-amd-amdhsa--gfx950"\n.text\n'
    s += kernel_open(KNAME) + text(lin) + kernel_open(RNAME) + text(rl)
    s += '.section .rodata,"a"\n.p2align 6\n' + kernel_desc(KNAME, 512, 256) + '.p2align 6\n' + kernel_desc(RNAME, 64, 64)
    open(path, 'w').write(s)
    return p, lin, log, errs, setup, rsetup

if __name__ == '__main__':
    path = sys.argv[1] if len(sys.argv) > 1 else 'k.s'
    for a in sys.argv[2:]:
        k, v = a.split('='); OPT[k] = type(OPT[k])(v)
    p, lin, log, errs, setup, rsetup = build(path)
    res, cyc = estimate(p, lin)
    tot = 0
    for r in res:
        print('%-10s mfma %4d cyc %6d over %5d' % r)
        if r[0] != 'fallback': tot += r[2]
    print('total', tot, 'instrs', len(lin), 'nops', len(log), 'lds errs', len(errs))
    for l in log[:40]: print(l)
    for e in errs[:20]: print('ERR', e)
```
